```python
import torch

def _softmax(x, axis=-1):
    return torch.softmax(x, dim=axis)
def _gelu(x):
    return torch.nn.functional.gelu(x, approximate="tanh")
def _silu(x):
    return torch.nn.functional.silu(x)
def _sigmoid(x):
    return torch.sigmoid(x)
def _layernorm(x, axis=-1, eps=1e-5):
    m = x.mean(dim=axis, keepdim=True)
    v = x.var(dim=axis, keepdim=True, unbiased=False)
    return (x - m) / torch.sqrt(v + eps)
def _scatter_add(tgt, idx, src, axis=0):
    return tgt.clone().index_add_(axis, idx, src)
def _segment_sum(src, seg, n):
    out = torch.zeros((n,) + src.shape[1:], dtype=src.dtype)
    return out.index_add_(0, seg, src)
def _pad(x, pw):
    flat = tuple(v for pair in reversed(pw) for v in pair)
    return torch.nn.functional.pad(x, flat)

kernel_name = 'interleave_layers__softmax_full_mha__mixer_s_mlp__prompt'

def setup_inputs():

    _w = (lambda a: (lambda t: t.to(torch.bfloat16) if t.is_floating_point() else t)(torch.as_tensor(a)))
    def _A_setup():
        B, S, D = 1, 2048, 448
        return {
            "x": _w((lambda *s: torch.randn(*s, dtype=torch.bfloat16) * 0.05)(B, S, D)),
            "wqkv": _w((lambda *s: torch.randn(*s, dtype=torch.bfloat16) * 0.05)(D, 3 * D)),
            "wo": _w((lambda *s: torch.randn(*s, dtype=torch.bfloat16) * 0.05)(D, D)),
        }
    _A_in = _A_setup()

    def _B_setup():
        B, S, D, F = 1, 2048, 448, 1792
        return {
            "x":  _w((lambda *s: torch.randn(*s, dtype=torch.bfloat16) * 0.05)(B, S, D)),
            "w1": _w((lambda *s: torch.randn(*s, dtype=torch.bfloat16) * 0.8)(D, D) * (D ** -0.5)),
            "w2": _w((lambda *s: torch.randn(*s, dtype=torch.bfloat16) * 0.8)(D, D) * (D ** -0.5)),
            "w3": _w((lambda *s: torch.randn(*s, dtype=torch.bfloat16) * 0.8)(D, F) * (D ** -0.5)),
            "w4": _w((lambda *s: torch.randn(*s, dtype=torch.bfloat16) * 0.8)(F, D) * (F ** -0.5)),
        }
    _B_in = _B_setup()

    return {
        "A_x": _A_in["x"],
        "A_wqkv": _A_in["wqkv"],
        "A_wo": _A_in["wo"],
        "B_x": _B_in["x"],
        "B_w1": _B_in["w1"],
        "B_w2": _B_in["w2"],
        "B_w3": _B_in["w3"],
        "B_w4": _B_in["w4"],
    }

def reference(A_x, A_wqkv, A_wo, B_x, B_w1, B_w2, B_w3, B_w4):
    def _A_ref(x, wqkv, wo):
        B, S, D = x.shape
        H = 16; Dh = D // H
        qkv = (lambda x, *d: x.permute(*d))((x @ wqkv).reshape(B, S, 3, H, Dh), 2, 0, 3, 1, 4)
        q, k, v = qkv[0], qkv[1], qkv[2]
        scale = Dh ** -0.5
        scores = torch.einsum("bhqd,bhkd->bhqk", q, k) * scale
        p = _softmax(scores, axis=-1)
        o = torch.einsum("bhqk,bhkd->bhqd", p, v)
        return (lambda x, *d: x.permute(*d))(o, 0, 2, 1, 3).reshape(B, S, D) @ wo

    def _B_ref(x, w1, w2, w3, w4):
        B, S, D = x.shape
        h = _gelu(_layernorm(x, axis=-1) @ w1)
        c = D // 4
        g0 = _pad(h[:, :, 0*c:1*c], ((0, 0), (1, 0), (0, 0)))[:, :S, :]
        g1 = _pad(h[:, :, 1*c:2*c], ((0, 0), (0, 1), (0, 0)))[:, 1:, :]
        g2 = _pad(h[:, :, 2*c:3*c], ((0, 0), (2, 0), (0, 0)))[:, :S, :]
        g3 = _pad(h[:, :, 3*c:   ], ((0, 0), (0, 2), (0, 0)))[:, 2:, :]
        hs = torch.concatenate([g0, g1, g2, g3], axis=-1) @ w2
        x1 = x + hs
        h2 = _gelu(_layernorm(x1, axis=-1) @ w3) @ w4
        return x1 + h2

    x = A_x
    x = x + _A_ref(_layernorm(x, axis=-1), A_wqkv, A_wo)
    x = x + _B_ref(_layernorm(x, axis=-1), B_w1, B_w2, B_w3, B_w4)
    x = x + _A_ref(_layernorm(x, axis=-1), A_wqkv, A_wo)
    x = x + _B_ref(_layernorm(x, axis=-1), B_w1, B_w2, B_w3, B_w4)
    return x
```

```python
import re

def v(i, n=1):
    return f"v{i}" if n == 1 else f"v[{i}:{i+n-1}]"
def a(i, n=1):
    return f"a{i}" if n == 1 else f"a[{i}:{i+n-1}]"
def s(i, n=1):
    return f"s{i}" if n == 1 else f"s[{i}:{i+n-1}]"

class R:
    def __init__(self, kind, idx):
        self.kind, self.idx = kind, idx
    def __call__(self, off=0, n=1):
        i = self.idx + off
        return f"{self.kind}{i}" if n == 1 else f"{self.kind}[{i}:{i+n-1}]"
    def at(self, off):
        return R(self.kind, self.idx + off)
def V(i): return R('v', i)
def A(i): return R('a', i)

class Asm:
    def __init__(self):
        self.lines = []
        self.vm = []
        self.lg = []
        self.nlabel = 0
    def e(self, txt):
        self.lines.append("    " + txt)
    def c(self, txt):
        self.lines.append("    ; " + txt)
    def label(self, name):
        self.lines.append(name + ":")
    def newlabel(self, base):
        self.nlabel += 1
        return f"L_{base}_{self.nlabel}"
    def raw(self, txt):
        self.lines.append(txt)
    def text(self):
        return "\n".join(self.lines) + "\n"
    def nop(self, n):
        while n > 0:
            k = min(n, 16)
            self.e(f"s_nop {k-1}")
            n -= k
    def vmem(self, txt, tag):
        self.e(txt)
        self.vm.append(tag)
    def lds(self, txt, tag):
        self.e(txt)
        self.lg.append(tag)
    def vm_count(self, tag):
        tags = tag if isinstance(tag, (list, tuple, set)) else [tag]
        last = -1
        for i, t in enumerate(self.vm):
            if t in tags:
                last = i
        if last < 0:
            return None
        return len(self.vm) - 1 - last
    def lg_count(self, tag):
        tags = tag if isinstance(tag, (list, tuple, set)) else [tag]
        last = -1
        for i, t in enumerate(self.lg):
            if t in tags:
                last = i
        if last < 0:
            return None
        return len(self.lg) - 1 - last
    def wait(self, vm=None, lg=None):
        parts = []
        if vm is not None:
            n = 0 if vm == 0 else self.vm_count(vm)
            if n is not None:
                assert n <= 63, n
                parts.append(f"vmcnt({n})")
                self.vm = self.vm[len(self.vm) - n:] if n else []
        if lg is not None:
            n = 0 if lg == 0 else self.lg_count(lg)
            if n is not None:
                n = min(n, 15)
                parts.append(f"lgkmcnt({n})")
                self.lg = self.lg[len(self.lg) - n:] if n else []
        if parts:
            self.e("s_waitcnt " + " ".join(parts))
            return True
        return False
    def waitstr(self, vm=None, lg=None):
        n0 = len(self.lines)
        if self.wait(vm, lg):
            return self.lines.pop().strip()
        return None
```

```python
import sys, math, struct
from asm import *

NAME = "interleave_layers__softmax_full_mha__mixer_s_mlp__prompt"
MB = 1 << 20
def LFLAG(l): return l * 4096
def XTAB(l): return 8192 + l * 4096
def HFLAG(l): return 16384 + l * 8192
QF0, QF_L = 1 * MB, 2 * MB
KVF0, KVF_L = 5 * MB, 4 * MB
LB0, LB_L = 16 * MB, 32 * MB
OF, XA, HF, HF2, X1, XF = [i * 2 * MB for i in range(6)]
STA, ST1, STF = 12 * MB, 12 * MB + MB // 2, 13 * MB
HH = 16 * MB
STAMP = 96 * MB
SLOT = 28672
S0, S1, S2, S3 = 0, SLOT, 2 * SLOT, 3 * SLOT
MISC = 4 * SLOT
S4 = MISC + 20480
LDS_BYTES = 163840
XCH = MISC
CSB = MISC + 16384
TRB = MISC + 16384 + 512
sWS, sW, sX = 4, 8, 12
sPX, sPQKV, sPWO, sPW1, sPW2, sPW3, sPW4 = 16, 18, 20, 24, 26, 28, 30
sPOUT, sPDBG, sPWS = 32, 34, 36
sLAYER, sSET, sR, sWAVE, sBLK, sHEAD, sRB4, sCS, sRB2, sFS = 38, 39, 40, 41, 42, 43, 44, 45, 46, 47
sMODE, sLB, sTT, sKH = 48, 49, 50, 51
sC4 = 52
sT = 60
sDS = 70
sMSK = 72
sSPIN, sNP, sCNT, sKV, sKVB, sIT = 74, 75, 76, 77, 78, 79
sEX = 80
sFLG = 82
sSTP = 84
vLANE, vL16, vTR, vG8, vPOLL = 0, 1, 2, 3, 4
vT = 5
vMEAN, vR1 = 12, 13
vA0, vA1 = 14, 15
vX = 16

EPS = 1e-5
def f2u(x): return struct.unpack('<I', struct.pack('<f', x))[0]
def fx(x): return hex(f2u(x))
LOG2E = 1.4426950408889634
QSCALE = LOG2E / math.sqrt(28.0)
GC0 = -2.0 * math.sqrt(2.0 / math.pi) * LOG2E
GC1 = GC0 * 0.044715
SPIN_MAX = 200000

class Gen(Asm):
    def __init__(self, stamps=False, stop=None):
        super().__init__()
        self.stamps = stamps
        self.stop = stop
        self.nstamp = 0

    def c4(self, k):
        return "0" if k == 0 else s(sC4 + k - 1)

    def stamp(self, idx):
        if self.stamps:
            self.e(f"s_memtime s[{sT+8}:{sT+9}]")
            self.e("s_waitcnt lgkmcnt(0)")
            self.e(f"v_writelane_b32 v255, {s(sT+8)}, {idx}")
            self.lg = []

    def dump_stamps(self, launch):
        if not self.stamps: return
        self.c("dump stamps (diagnostic build only)")
        self.e(f"s_lshl_b32 {s(sT)}, s2, 2")
        self.e(f"s_add_u32 {s(sT)}, {s(sT)}, {s(sWAVE)}")
        self.e(f"s_lshl_b32 {s(sT)}, {s(sT)}, 7")
        if launch is None:
            self.e(f"s_add_u32 {s(sT+1)}, {s(sLAYER)}, 1")
            self.e(f"s_lshl_b32 {s(sT+1)}, {s(sT+1)}, 17")
            self.e(f"s_add_u32 {s(sT)}, {s(sT)}, {s(sT+1)}")
        self.e(f"s_add_u32 {s(sT)}, {s(sT)}, {STAMP}")
        self.e(f"v_lshlrev_b32 {v(vT+1)}, 2, {v(vLANE)}")
        self.e("s_mov_b32 exec_hi, 0")
        self.e(f"buffer_store_dword v255, {v(vT+1)}, {s(sWS,4)}, {s(sT)} offen")
        self.e("s_mov_b64 exec, -1")

    def setup(self, done):
        e = self.e
        e("s_cmp_ge_u32 s2, 256")
        e(f"s_cbranch_scc1 {done}")
        e(f"s_load_dwordx16 s[16:31], s[0:1], 0")
        e(f"s_load_dwordx4 s[32:35], s[0:1], 64")
        e(f"s_load_dwordx2 s[36:37], s[0:1], 80")
        if self.stamps:
            e("v_mov_b32 v255, 0")
        e(f"v_lshrrev_b32 {v(vT)}, 6, v0")
        e(f"v_and_b32 {v(vLANE)}, 63, v0")
        e(f"v_readfirstlane_b32 {s(sWAVE)}, {v(vT)}")
        e(f"v_lshlrev_b32 {v(vL16)}, 4, {v(vLANE)}")
        e(f"s_and_b32 {s(sSET)}, s2, 7")
        e(f"s_lshr_b32 {s(sR)}, s2, 3")
        e(f"s_and_b32 {s(sHEAD)}, {s(sR)}, 15")
        e(f"s_lshr_b32 {s(sT)}, {s(sR)}, 4")
        e(f"s_lshl_b32 {s(sBLK)}, {s(sSET)}, 1")
        e(f"s_add_u32 {s(sBLK)}, {s(sBLK)}, {s(sT)}")
        for k in range(8): e(f"s_movk_i32 {s(sC4+k)}, {hex(4096*(k+1))}" if k < 7 else f"s_mov_b32 {s(sC4+k)}, {4096*(k+1)}")
        e(f"v_lshrrev_b32 {v(vT)}, 5, {v(vLANE)}")
        e(f"v_lshlrev_b32 {v(vTR)}, 8, {v(vT)}")
        e(f"v_bfe_u32 {v(vT)}, {v(vLANE)}, 2, 2")
        e(f"v_lshl_add_u32 {v(vTR)}, {v(vT)}, 6, {v(vTR)}")
        e(f"v_bfe_u32 {v(vT)}, {v(vLANE)}, 4, 1")
        e(f"v_lshl_add_u32 {v(vTR)}, {v(vT)}, 5, {v(vTR)}")
        e(f"v_and_b32 {v(vT)}, 3, {v(vLANE)}")
        e(f"v_lshl_add_u32 {v(vTR)}, {v(vT)}, 3, {v(vTR)}")
        e("s_waitcnt lgkmcnt(0)")
        self.srd(sWS, sPWS, 256 * MB)
        self.stamp(0)

    def srd(self, d, p, nbytes):
        e = self.e
        e(f"s_mov_b32 {s(d)}, {s(p)}")
        e(f"s_and_b32 {s(d+1)}, {s(p+1)}, 0xffff")
        e(f"s_mov_b32 {s(d+2)}, {nbytes}")
        e(f"s_mov_b32 {s(d+3)}, 0x20000")

    def lane_g8(self, dst, pitch):
        e = self.e
        e(f"v_bfe_u32 {v(vT)}, {v(vLANE)}, 2, 3")
        e(f"v_mul_u32_u24 {v(dst)}, {pitch}, {v(vT)}")
        e(f"v_lshrrev_b32 {v(vT)}, 5, {v(vLANE)}")
        e(f"v_lshl_add_u32 {v(dst)}, {v(vT)}, 6, {v(dst)}")
        e(f"v_and_b32 {v(vT)}, 3, {v(vLANE)}")
        e(f"v_lshl_add_u32 {v(dst)}, {v(vT)}, 4, {v(dst)}")

    def lane_t32(self, dst, pitch):
        e = self.e
        e(f"v_lshrrev_b32 {v(vT)}, 2, {v(vLANE)}")
        e(f"v_mul_u32_u24 {v(dst)}, {pitch}, {v(vT)}")
        e(f"v_and_b32 {v(vT)}, 3, {v(vLANE)}")
        e(f"v_lshl_add_u32 {v(dst)}, {v(vT)}, 4, {v(dst)}")

    def dma_items(self, init, n, gstep, lstep, voff, tag):
        items = []
        for i in range(n):
            it = []
            if i == 0:
                it += [(x, None) for x in init]
            else:
                it += [(f"s_add_u32 m0, m0, {lstep}", None), (f"s_add_u32 {s(sDS)}, {s(sDS)}, {gstep}", None)]
            it.append((f"buffer_load_dwordx4 {v(voff)}, {s(sW,4)}, {s(sDS)} offen lds", tag))
            items.append(it)
        return items
    def srd_items(self, p, nbytes):
        return [f"s_mov_b32 {s(sW)}, {s(p)}", f"s_and_b32 {s(sW+1)}, {s(p+1)}, 0xffff",
                f"s_mov_b32 {s(sW+2)}, {nbytes}", f"s_mov_b32 {s(sW+3)}, 0x20000"]
    def dma_g8(self, p, nbytes, pitch, scol, colshift, lds, voff, tag):
        init = self.srd_items(p, nbytes) + [
            f"s_lshl_b32 {s(sDS)}, {s(sWAVE)}, 10", f"s_add_u32 m0, {s(sDS)}, {lds}",
            f"s_mul_i32 {s(sDS)}, {s(sWAVE)}, {8*pitch}", f"s_lshl_b32 {s(sT+7)}, {s(scol)}, {colshift}",
            f"s_add_u32 {s(sDS)}, {s(sDS)}, {s(sT+7)}"]
        return self.dma_items(init, 14, 32 * pitch, 4096, voff, tag)
    def dma_t32(self, p, nbytes, pitch, scol, colmul, coladd, lds, voff, tag):
        init = self.srd_items(p, nbytes) + [
            f"s_lshl_b32 {s(sDS)}, {s(sWAVE)}, 10", f"s_add_u32 m0, {s(sDS)}, {lds}",
            f"s_mul_i32 {s(sDS)}, {s(sWAVE)}, {16*pitch}", f"s_mul_i32 {s(sT+7)}, {s(scol)}, {colmul}",
            f"s_add_u32 {s(sDS)}, {s(sDS)}, {s(sT+7)}", f"s_add_u32 {s(sDS)}, {s(sDS)}, {coladd}"]
        return self.dma_items(init, 7, 64 * pitch, 4096, voff, tag)
    def dma_w4chunk(self, c, lds, tag):
        init = self.srd_items(sPW4, 1792 * 896) + [
            f"s_mul_i32 {s(sDS)}, {s(sKH)}, 14336", f"s_lshl_b32 {s(sT+7)}, {s(sTT)}, 10",
            f"s_add_u32 {s(sDS)}, {s(sDS)}, {s(sT+7)}", f"s_add_u32 m0, {s(sDS)}, {lds}",
            f"s_mul_i32 {s(sDS)}, {s(sKH)}, {896*896}", f"s_mul_i32 {s(sT+7)}, {s(sTT)}, {8*896}",
            f"s_add_u32 {s(sDS)}, {s(sDS)}, {s(sT+7)}", f"s_lshl_b32 {s(sT+7)}, {s(sCS)}, 7",
            f"s_add_u32 {s(sDS)}, {s(sDS)}, {s(sT+7)}", f"s_add_u32 {s(sDS)}, {s(sDS)}, {112*c*896}"]
        return self.dma_items(init, 7, 16 * 896, 2048, vG8, tag)
    def dma_wqkv(self, which, voff):
        lds = [S4, S0, S1][which]
        return self.dma_t32(sPQKV, 448 * 2688, 2688, sHEAD, 56, which * 896, lds, voff, f"wq{which}")
    def emit_items(self, items):
        for it in items:
            for txt, tag in it:
                if tag: self.vmem(txt, tag)
                else: self.e(txt)
    def flat(self, items):
        return [x for it in items for x in it]
    def emit1(self, x):
        txt, tag = x
        if tag is None: self.e(txt)
        elif tag.startswith('lds:'): self.lds(txt, tag[4:])
        else: self.vmem(txt, tag)

    def mfma(self, d, A_, B_, c):
        self.e(f"v_mfma_f32_32x32x16_bf16 {d}, {A_}, {B_}, {c}")
    def trd(self, dst, vaddr, off, tag):
        assert 0 <= off < 65536, off
        self.lds(f"ds_read_b64_tr_b16 {dst}, {v(vaddr)} offset:{off}", tag)

    def colsum(self, nact, vaddr, stepb, second):
        e = self.e
        lab = self.newlabel("cs_skip"); lp = self.newlabel("cs_loop")
        AF, ONE, ACC = A(160), A(176), A(180)
        e(f"s_cmp_ge_u32 {s(sWAVE)}, {nact}")
        e(f"s_cbranch_scc1 {lab}")
        e(f"v_mov_b32 {v(vT)}, 0x3f803f80")
        for i in range(4): e(f"v_accvgpr_write_b32 {ONE(i)}, {v(vT)}")
        nb = 4
        for q in range(28 + 3):
            if q < 28:
                b = AF.at(4 * (q % nb))
                self.trd(b(0, 2), vaddr, q * stepb, f"c{q}")
                self.trd(b(2, 2), vaddr, q * stepb + second, f"c{q}")
            r = q - 3
            if r >= 0:
                self.wait(lg=f"c{r}")
                self.mfma(ACC(0, 16), AF(4 * (r % nb), 4), ONE(0, 4), "0" if r == 0 else ACC(0, 16))
        e(f"v_lshrrev_b32 {v(vT)}, 5, {v(vLANE)}")
        e(f"v_lshlrev_b32 {v(vT)}, 4, {v(vT)}")
        e(f"s_lshl_b32 {s(sT)}, {s(sWAVE)}, 7")
        e(f"s_add_u32 {s(sT)}, {s(sT)}, {CSB}")
        e(f"v_add_u32 {v(vT)}, {s(sT)}, {v(vT)}")
        e(f"s_mov_b32 exec_lo, 1")
        e(f"s_mov_b32 exec_hi, 1")
        self.nop(6)
        for q in range(4):
            self.lds(f"ds_write_b128 {v(vT)}, {ACC(4*q,4)} offset:{32*q}", "csw")
        e("s_mov_b64 exec, -1")
        self.wait(lg=0)
        self.label(lab)

    def read_cs(self, dst, tile_s=None, tile_c=0):
        e = self.e
        e(f"v_lshrrev_b32 {v(vT)}, 5, {v(vLANE)}")
        e(f"v_lshlrev_b32 {v(vT)}, 4, {v(vT)}")
        if tile_s is not None:
            e(f"s_lshl_b32 {s(sT)}, {s(tile_s)}, 7")
            e(f"v_add_u32 {v(vT)}, {s(sT)}, {v(vT)}")
        e(f"v_add_u32 {v(vT)}, {CSB + 128*tile_c}, {v(vT)}")
        for q in range(4):
            self.lds(f"ds_read_b128 {v(dst+4*q,4)}, {v(vT)} offset:{32*q}", "cs")

    def stats_finish(self, vs, tmp):
        e = self.e
        e(f"v_mov_b32 {v(tmp)}, {v(vs)}")
        self.nop(2)
        e(f"v_permlane32_swap_b32 {v(tmp)}, {v(vs)}")
        e(f"v_mul_f32 {v(vMEAN)}, {fx(1/448)}, {v(tmp)}")
        e(f"v_mul_f32 {v(vs)}, {fx(1/448)}, {v(vs)}")
        e(f"v_fma_f32 {v(tmp)}, -{v(vMEAN)}, {v(vMEAN)}, {v(vs)}")
        e(f"v_max_f32 {v(tmp)}, 0, {v(tmp)}")
    def stats_load(self, dst, region, stb):
        e = self.e
        e(f"s_lshl_b32 {s(sT)}, {s(stb)}, 12")
        e(f"s_add_u32 {s(sT)}, {s(sT)}, {s(sLB)}")
        e(f"s_add_u32 {s(sT)}, {s(sT)}, {region}")
        for q in range(3):
            self.vmem(f"buffer_load_dwordx4 {v(dst+4*q,4)}, {v(vL16)}, {s(sWS,4)}, {s(sT)} offen offset:{1024*q} sc1", "st")
        self.vmem(f"buffer_load_dwordx2 {v(dst+12,2)}, {v(vL16)}, {s(sWS,4)}, {s(sT)} offen offset:3072 sc1", "st")
    def stats_sum(self, dst):
        e = self.e
        for i in range(7): e(f"v_add_f32 {v(dst+i)}, {v(dst+i)}, {v(dst+7+i)}")
        for i in range(3): e(f"v_add_f32 {v(dst+i)}, {v(dst+i)}, {v(dst+3+i)}")
        e(f"v_add_f32 {v(dst)}, {v(dst)}, {v(dst+6)}")
        e(f"v_add_f32 {v(dst+1)}, {v(dst+1)}, {v(dst+2)}")
        e(f"v_add_f32 {v(dst)}, {v(dst)}, {v(dst+1)}")
    def stats_partial(self, x, t):
        e = self.e
        e(f"v_add_f32 {v(t)}, {v(x)}, {v(x+1)}")
        e(f"v_mul_f32 {v(t+1)}, {v(x)}, {v(x)}")
        e(f"v_add_f32 {v(t+2)}, {v(x+2)}, {v(x+3)}")
        e(f"v_mul_f32 {v(t+3)}, {v(x+1)}, {v(x+1)}")
        for i in range(2, 16):
            e(f"v_fmac_f32 {v(t+1+2*(i&1))}, {v(x+i)}, {v(x+i)}")
            if i >= 4: e(f"v_add_f32 {v(t+2*(i&1))}, {v(t+2*(i&1))}, {v(x+i)}")
        e(f"v_add_f32 {v(t)}, {v(t)}, {v(t+2)}")
        e(f"v_add_f32 {v(t+1)}, {v(t+1)}, {v(t+3)}")
        self.nop(2)
        e(f"v_permlane32_swap_b32 {v(t)}, {v(t+1)}")
        e(f"v_add_f32 {v(t)}, {v(t)}, {v(t+1)}")
    def pack16(self, dst, src):
        for i in range(8):
            self.e(f"v_cvt_pk_bf16_f32 {v(dst+i)}, {v(src+2*i)}, {v(src+2*i+1)}")

    def moded(self, fn):
        l1, l2 = self.newlabel("slow"), self.newlabel("join")
        self.e(f"s_cmp_lg_u32 {s(sMODE)}, 0")
        self.e(f"s_cbranch_scc1 {l1}")
        vm0 = list(self.vm)
        fn("")
        vm1 = list(self.vm)
        self.e(f"s_branch {l2}")
        self.label(l1)
        self.vm = vm0
        fn(" sc1")
        assert self.vm == vm1
        self.label(l2)

    def qkv(self, first):
        e = self.e
        B = V(64) if first else A(0)
        ACC = [V(176), V(192), V(208)]
        AF = A(128)
        slots = [S4, S0, S1]
        second = 256 if first else 512
        vAD = [vA0, vA1, vT + 6]
        if first:
            e(f"v_lshrrev_b32 {v(vT)}, 5, {v(vLANE)}")
            e(f"v_lshl_add_u32 {v(vA1)}, {v(vT)}, 8, {v(vTR)}")
        else:
            e(f"v_mov_b32 {v(vA1)}, {v(vTR)}")
        e(f"v_add_u32 {v(vA0)}, {S4}, {v(vA1)}")
        e(f"v_add_u32 {v(vT+6)}, {S1}, {v(vA1)}")
        e(f"s_lshl_b32 {s(sT+2)}, {s(sBLK)}, 2")
        e(f"s_add_u32 {s(sT+2)}, {s(sT+2)}, {s(sWAVE)}")
        def issue_b():
            if first:
                e(f"v_and_b32 {v(vT)}, 31, {v(vLANE)}")
                e(f"v_mul_u32_u24 {v(vT+1)}, 896, {v(vT)}")
                e(f"v_lshrrev_b32 {v(vT)}, 5, {v(vLANE)}")
                e(f"v_lshl_add_u32 {v(vT+1)}, {v(vT)}, 4, {v(vT+1)}")
                e(f"s_mul_i32 {s(sT)}, {s(sT+2)}, {32*896}")
                for q in range(28):
                    self.vmem(f"buffer_load_dwordx4 {B(4*q,4)}, {v(vT+1)}, {s(sX,4)}, {s(sT)} offen offset:{32*q}", f"b{q}")
            else:
                self.stats_load(32, STF, sT + 2)
                e(f"s_mul_i32 {s(sT)}, {s(sT+2)}, {SLOT}")
                e(f"s_add_u32 {s(sT)}, {s(sT)}, {s(sLB)}")
                e(f"s_add_u32 {s(sT)}, {s(sT)}, {XF}")
                e(f"v_add_u32 {v(vT+1)}, {s(sT)}, {v(vL16)}")
                for q in range(28):
                    self.vmem(f"buffer_load_dwordx4 {B(4*q,4)}, {v(vT+1)}, {s(sWS,4)}, {self.c4(q//4)} offen offset:{1024*(q%4)} sc1", f"b{q}")
        def cs():
            e(f"s_cmp_eq_u32 {s(sWAVE)}, 0")
            e(f"s_cselect_b32 {s(sT)}, {S4}, {S0}")
            e(f"s_cmp_eq_u32 {s(sWAVE)}, 2")
            e(f"s_cselect_b32 {s(sT)}, {S1}, {s(sT)}")
            e(f"v_add_u32 {v(vT+2)}, {s(sT)}, {v(vTR)}")
            self.colsum(3, vT + 2, 1024, 512)
        if first:
            issue_b()
            self.wait(vm=["wq0", "wq1", "wq2"])
            e("s_barrier")
            self.stamp(1)
            cs()
        else:
            cs()
            self.stamp(15)
            e(f"s_lshr_b32 {s(sT)}, {s(sR)}, 4")
            e(f"s_mul_i32 {s(sT)}, {s(sT)}, 14")
            e(f"s_lshl_b32 {s(sMSK)}, 0x3fff, {s(sT)}")
            e(f"s_mov_b32 {s(sMSK+1)}, 0")
            self.poll(6)
            self.stamp(16)
            issue_b()
        D = 2
        def aread(q):
            out = []
            for t in range(3):
                b = AF.at(12 * (q % 3) + 4 * t)
                out.append((f"ds_read_b64_tr_b16 {b(0,2)}, {v(vAD[t])} offset:{q*1024}", f"lds:a{q}"))
                out.append((f"ds_read_b64_tr_b16 {b(2,2)}, {v(vAD[t])} offset:{q*1024+second}", f"lds:a{q}"))
            return out
        for q in range(D):
            for x in aread(q): self.emit1(x)
        vS = 32
        if first:
            e(f"v_mov_b32 {v(vT+3)}, 0x3f803f80")
            for i in range(4): e(f"v_mov_b32 {v(vS+i)}, 0")
        for q in range(28):
            self.wait(vm=f"b{q}", lg=f"a{q}")
            nxt = aread(q + D) if q + D < 28 else []
            for t in range(3):
                af = AF(12 * (q % 3) + 4 * t, 4)
                cc = "0" if q == 0 else ACC[t](0, 16)
                if t < 2: self.mfma(ACC[t](0, 16), af, B(4 * q, 4), cc)
                else: self.mfma(ACC[t](0, 16), B(4 * q, 4), af, cc)
                for x in nxt[2 * t:2 * t + 2]: self.emit1(x)
                if first:
                    rr = [(0, 1), (2,), (3,)][t]
                    for r in rr:
                        e(f"v_dot2c_f32_bf16 {v(vS+(r&1))}, {B(4*q+r)}, {v(vT+3)}")
                        e(f"v_dot2c_f32_bf16 {v(vS+2+(r&1))}, {B(4*q+r)}, {B(4*q+r)}")
        self.stamp(2 if first else 17)
        if first:
            self.nop(3)
            e(f"v_add_f32 {v(vS)}, {v(vS)}, {v(vS+1)}")
            e(f"v_add_f32 {v(vS+1)}, {v(vS+2)}, {v(vS+3)}")
            self.nop(2)
            e(f"v_permlane32_swap_b32 {v(vS)}, {v(vS+1)}")
            e(f"v_add_f32 {v(vS)}, {v(vS)}, {v(vS+1)}")
        else:
            self.wait(vm="st")
            self.stats_sum(vS)
        self.stats_finish(vS, vS + 1)
        vR, vNM, vRQ = 34, 35, 36
        e(f"v_add_f32 {v(vS+1)}, {fx(EPS)}, {v(vS+1)}")
        e(f"v_rsq_f32 {v(vR)}, {v(vS+1)}")
        e(f"v_sub_f32 {v(vNM)}, 0, {v(vMEAN)}")
        e(f"v_mul_f32 {v(vRQ)}, {fx(QSCALE)}, {v(vR)}")
        e(f"v_mul_f32 {v(vRQ+1)}, {v(vNM)}, {v(vR)}")
        e(f"v_cmp_gt_u32 vcc, 32, {v(vLANE)}")
        e(f"s_lshl_b32 {s(sT)}, {s(sWAVE)}, 8")
        e(f"s_add_u32 {s(sT)}, {s(sT)}, {TRB}")
        e(f"v_cndmask_b32 {v(vRQ+2)}, {v(vRQ+1)}, {v(vR)}, vcc")
        e(f"v_lshl_add_u32 {v(vT)}, {v(vLANE)}, 2, {s(sT)}")
        self.lds(f"ds_write_b32 {v(vT)}, {v(vRQ+2)}", "trw")
        e("s_waitcnt lgkmcnt(0)"); self.lg = []
        e("s_barrier")
        CSQ, CSK, TR, TN = 64, 80, 96, 112
        self.read_cs(CSQ, None, 0)
        self.read_cs(CSK, None, 1)
        e(f"v_lshrrev_b32 {v(vT)}, 5, {v(vLANE)}")
        e(f"v_lshl_add_u32 {v(vT)}, {v(vT)}, 4, {s(sT)}")
        for q in range(4):
            self.lds(f"ds_read_b128 {v(TR+4*q,4)}, {v(vT)} offset:{32*q}", "tr")
            self.lds(f"ds_read_b128 {v(TN+4*q,4)}, {v(vT)} offset:{128+32*q}", "tr")
        e(f"v_and_b32 {v(vT+1)}, 31, {v(vLANE)}")
        e(f"v_lshlrev_b32 {v(vT+1)}, 2, {v(vT+1)}")
        e(f"v_add_u32 {v(vT+1)}, {CSB+256}, {v(vT+1)}")
        self.lds(f"ds_read_b32 {v(vRQ+2)}, {v(vT+1)}", "tr")
        PQ, PK, PV = 128, 136, 144
        e(f"s_lshl_b32 {s(sT+3)}, {s(sHEAD)}, 6")
        e(f"s_add_u32 {s(sT+3)}, {s(sT+3)}, {s(sT+2)}")
        e(f"s_lshl_b32 {s(sT+4)}, {s(sT+3)}, 11")
        e(f"s_lshl_b32 {s(sT+5)}, {s(sT+3)}, 12")
        lay = 0 if first else 1
        e(f"s_add_u32 {s(sT+4)}, {s(sT+4)}, {QF0 + lay*QF_L}")
        e(f"s_add_u32 {s(sT+5)}, {s(sT+5)}, {KVF0 + lay*KVF_L}")
        self.wait(lg="cs")
        for t, (cs_, sc, P) in enumerate([(CSQ, vRQ, PQ), (CSK, vR, PK)]):
            ac = ACC[t].idx
            for i in range(16): e(f"v_fmac_f32 {v(ac+i)}, {v(vNM)}, {v(cs_+i)}")
            for i in range(16): e(f"v_mul_f32 {v(ac+i)}, {v(ac+i)}, {v(sc)}")
            self.pack16(P, ac)
            e("s_mov_b32 exec_lo, 0")
            e(f"v_mov_b32 {v(P+6)}, {'0' if t == 0 else '0x3f80'}")
            e(f"v_mov_b32 {v(P+7)}, 0")
            e("s_mov_b32 exec_lo, -1")
            for q in range(2):
                self.vmem(f"buffer_store_dwordx4 {v(P+4*q,4)}, {v(vL16)}, {s(sWS,4)}, {s(sT+4+t)} offen offset:{1024*q}", "o")
        self.wait(lg=0)
        ac = ACC[2].idx
        for i in range(16): e(f"v_mul_f32 {v(ac+i)}, {v(ac+i)}, {v(TR+i)}")
        for i in range(16): e(f"v_fmac_f32 {v(ac+i)}, {v(TN+i)}, {v(vRQ+2)}")
        self.pack16(PV, ac)
        e("s_mov_b32 exec_lo, 0x10000000")
        e("s_mov_b32 exec_hi, 0x10000000")
        for i in range(8): e(f"v_mov_b32 {v(PV+i)}, 0x3f803f80")
        e("s_mov_b32 exec_lo, 0xe0000000")
        e("s_mov_b32 exec_hi, 0xe0000000")
        for i in range(8): e(f"v_mov_b32 {v(PV+i)}, 0")
        e("s_mov_b64 exec, -1")
        for q in range(2):
            self.vmem(f"buffer_store_dwordx4 {v(PV+4*q,4)}, {v(vL16)}, {s(sWS,4)}, {s(sT+5)} offen offset:{2048+1024*q}", "o")
        self.stamp(3 if first else 18)

    def kernel1(self):
        e = self.e
        self.begin("k1_kernel")
        self.setup("L_k1_done")
        self.srd(sX, sPX, 2048 * 896)
        self.lane_t32(vT + 4, 2688)
        for w_ in range(3): self.emit_items(self.dma_wqkv(w_, vT + 4))
        e(f"v_mov_b32 {v(vT)}, 0")
        e(f"v_lshlrev_b32 {v(vT+1)}, 2, {v(vLANE)}")
        e(f"s_lshl_b32 {s(sT)}, s2, 7")
        e("s_mov_b32 exec_hi, 0")
        self.vmem(f"buffer_store_dword {v(vT)}, {v(vT+1)}, {s(sWS,4)}, {s(sT)} offen", "z")
        e("s_mov_b32 exec_hi, -1")
        self.qkv(True)
        self.dump_stamps(0)
        self.label("L_k1_done")
        e("s_endpgm")
        self.vm = []; self.lg = []

    def begin(self, name):
        self.raw(f".globl {name}")
        self.raw(".p2align 8")
        self.raw(f".type {name},@function")
        self.label(name)

def descriptor(name):
    return f""".amdhsa_kernel {name}
  .amdhsa_next_free_vgpr 512
  .amdhsa_next_free_sgpr 102
  .amdhsa_accum_offset 256
  .amdhsa_group_segment_fixed_size 0
  .amdhsa_kernarg_size 88
  .amdhsa_user_sgpr_count 2
  .amdhsa_user_sgpr_kernarg_segment_ptr 1
  .amdhsa_system_sgpr_workgroup_id_x 1
  .amdhsa_float_denorm_mode_32 3
.end_amdhsa_kernel
"""
```

```python
import re, sys

REG = re.compile(r'\b([vas])(\d+)\b|\b([vas])\[(\d+):(\d+)\]')
def regs(op):
    out = set()
    op = op.strip()
    for m in REG.finditer(op):
        if m.group(1):
            out.add((m.group(1), int(m.group(2))))
        else:
            for i in range(int(m.group(4)), int(m.group(5)) + 1):
                out.add((m.group(3), i))
    if re.search(r'\bvcc\b', op): out |= {('s', 106), ('s', 107)}
    if re.search(r'\bvcc_lo\b', op): out.add(('s', 106))
    if re.search(r'\bvcc_hi\b', op): out.add(('s', 107))
    if re.search(r'\bexec\b', op): out |= {('s', 126), ('s', 127)}
    if re.search(r'\bexec_lo\b', op): out.add(('s', 126))
    if re.search(r'\bexec_hi\b', op): out.add(('s', 127))
    if re.search(r'\bm0\b', op): out.add(('s', 124))
    return out

TRANS = ('v_exp_', 'v_log_', 'v_rcp_', 'v_rsq_', 'v_sqrt_', 'v_sin_', 'v_cos_')
class I:
    def __init__(self, txt, ln):
        self.txt, self.ln = txt, ln
        t = txt.split(';')[0].strip()
        p = t.split(None, 1)
        self.op = p[0]
        ops = []
        if len(p) > 1:
            depth = 0; cur = ''
            for ch in p[1]:
                if ch == '[' or ch == '(': depth += 1
                if ch == ']' or ch == ')': depth -= 1
                if ch == ',' and depth == 0:
                    ops.append(cur.strip()); cur = ''
                else: cur += ch
            ops.append(cur.strip())
        self.ops = ops
        op = self.op
        self.mfma = op.startswith('v_mfma')
        self.valu = op.startswith('v_') and not self.mfma
        self.trans = op.startswith(TRANS)
        self.dot = op.startswith('v_dot')
        self.salu = op.startswith('s_')
        self.vmem = op.startswith(('buffer_', 'global_', 'flat_'))
        self.ds = op.startswith('ds_')
        self.ldsdma = self.vmem and re.search(r'\blds\b', t) is not None
        self.store = self.vmem and ('store' in op or 'atomic' in op)
        self.ws = 1
        if op == 's_nop': self.ws = int(ops[0]) + 1
        d, u = set(), set()
        if self.mfma:
            d = regs(ops[0]); self.A = regs(ops[1]); self.B = regs(ops[2]); self.C = regs(ops[3]); u = self.A | self.B | self.C
            self.passes = 8 if '32x32x16' in op else 4
        elif self.valu:
            if op.startswith('v_cmp'):
                d = regs(ops[0]); u = set().union(*[regs(o) for o in ops[1:]])
                if op.startswith('v_cmpx'): d |= {('s', 126), ('s', 127)}
            elif op.startswith('v_permlane') and 'swap' in op:
                d = regs(ops[0]) | regs(ops[1]); u = set(d)
            elif op.startswith(('v_add_co', 'v_sub_co', 'v_addc_co', 'v_subb_co')):
                d = regs(ops[0]) | regs(ops[1]); u = set().union(*[regs(o) for o in ops[2:]])
            else:
                d = regs(ops[0]); u = set().union(*[regs(o) for o in ops[1:]]) if len(ops) > 1 else set()
                if op.startswith(('v_fmac', 'v_dot2c', 'v_writelane')) or 'UNUSED_PRESERVE' in t: u |= d
                if op.startswith('v_cndmask') and len(ops) == 3: u |= {('s', 106), ('s', 107)}
        elif self.vmem:
            if self.ldsdma:
                u = set().union(*[regs(o) for o in ops]) | {('s', 124)}
            elif self.store:
                u = set().union(*[regs(o) for o in ops])
                self.data = regs(ops[0]) if op.startswith('buffer_') else regs(ops[1])
                if 'atomic' in op and 'sc0' in t and op.startswith('buffer_'): d = regs(ops[0])
            else:
                d = regs(ops[0]); u = set().union(*[regs(o) for o in ops[1:]])
        elif self.ds:
            if op.startswith(('ds_read', 'ds_bpermute', 'ds_permute', 'ds_swizzle')):
                d = regs(ops[0]); u = set().union(*[regs(o) for o in ops[1:]])
            else:
                u = set().union(*[regs(o) for o in ops])
        elif self.salu:
            if op.startswith(('s_cmp', 's_cbranch', 's_branch', 's_waitcnt', 's_barrier', 's_nop', 's_endpgm', 's_sleep', 's_setprio', 's_bitcmp')):
                u = set().union(*[regs(o) for o in ops]) if ops else set()
            else:
                d = regs(ops[0]); u = set().union(*[regs(o) for o in ops[1:]]) if len(ops) > 1 else set()
                if 'saveexec' in op: d |= {('s', 126), ('s', 127)}
        self.d, self.u = d, u
        self.wide_store = self.store and re.search(r'dwordx[34]', op) is not None
        self.dpp = 'dpp' in op or 'row_' in t or 'quad_perm' in t

def need(p, c):
    n = 0
    vd = {r for r in p.d if r[0] in 'va'}
    sd = {r for r in p.d if r[0] == 's'}
    cu, cd = c.u, c.d
    if p.mfma:
        ps = p.passes
        big = {4: 8, 8: 12}[ps]; ovl = {4: 6, 8: 10}[ps]; war = {4: 3, 8: 7}[ps]
        if c.mfma:
            if vd & (c.A | c.B): n = max(n, big)
            if vd & c.C and not (c.C == p.d and c.passes == ps): n = max(n, ovl)
            if vd & c.d and not (c.d == p.d): n = max(n, ovl)
        elif c.valu or c.vmem or c.ds:
            if vd & (cu | cd): n = max(n, big)
        if c.valu and (p.C & cd): n = max(n, war)
    if p.valu:
        if c.mfma and (vd & cu): n = max(n, 2)
        if p.trans and c.valu and not c.trans and (vd & cu): n = max(n, 1)
        if p.dot and c.valu and (vd & (cu | cd)):
            if not (c.op == p.op and not (vd & (regs(c.ops[1]) | regs(c.ops[2])))): n = max(n, 3)
        if c.op.startswith('v_permlane') and (vd & cu): n = max(n, 2)
        if c.op.startswith(('v_readlane', 'v_readfirstlane')) and (vd & cu): n = max(n, 1)
        if c.valu and c.dpp and (vd & cu): n = max(n, 2)
        if sd:
            if c.vmem and (sd & cu): n = max(n, 5)
            if c.valu and (sd & cu): n = max(n, 2)
            if c.op.startswith(('v_readlane', 'v_writelane')) and (sd & regs(c.ops[-1])): n = max(n, 4)
            if ('s', 126) in sd:
                if c.mfma: n = max(n, 4)
                if c.op.startswith(('v_readlane', 'v_readfirstlane', 'v_writelane', 'v_permlane')): n = max(n, 4)
                if c.dpp: n = max(n, 5)
        if 'sdwa' in p.op and c.valu and (vd & (cu | cd)): n = max(n, 1)
    if p.salu and ('s', 124) in p.d and c.ldsdma: n = max(n, 1)
    if p.wide_store and (c.valu or c.mfma) and (p.data & cd): n = max(n, 2)
    if p.wide_store and (c.vmem or c.ds) and (p.data & cd): n = max(n, 1)
    return n

def lint(text, window=20):
    ins, labels = [], {}
    for ln, line in enumerate(text.split('\n'), 1):
        t = line.split(';')[0].strip()
        if not t or t.startswith('.'): continue
        if t.endswith(':'):
            labels[t[:-1]] = len(ins); continue
        ins.append(I(t, ln))
    errs = []
    def succ(i):
        x = ins[i]
        if x.op == 's_endpgm': return []
        if x.op == 's_branch': return [labels[x.ops[0]]]
        if x.op.startswith('s_cbranch'): return [labels[x.ops[0]], i + 1]
        return [i + 1] if i + 1 < len(ins) else []
    for i, p in enumerate(ins):
        if not (p.mfma or p.valu or p.wide_store or (p.salu and ('s', 124) in p.d)): continue
        stack = [(j, 0) for j in succ(i)]
        seen = {}
        while stack:
            j, dist = stack.pop()
            if dist >= window or j >= len(ins): continue
            if seen.get(j, 99) <= dist: continue
            seen[j] = dist
            c = ins[j]
            n = need(p, c)
            if n > dist:
                errs.append(f"line {p.ln}: '{p.txt}' -> line {c.ln}: '{c.txt}' needs {n} has {dist}")
            for k in succ(j): stack.append((k, dist + c.ws))
    return errs

if __name__ == '__main__':
    e = lint(open(sys.argv[1]).read())
    for x in e: print(x)
    print(len(e), "hazards")
```

```python
import sys
from gen import *

class Gen2(Gen):
    def poll(self, phase):
        e = self.e
        skip, lp = self.newlabel("poll_done"), self.newlabel("poll")
        e(f"s_cmp_lg_u32 {s(sWAVE)}, 0")
        e(f"s_cbranch_scc1 {skip}")
        e(f"s_mov_b32 {s(sSPIN)}, 0")
        self.label(lp)
        e(f"buffer_load_dword {v(vT)}, {v(vPOLL)}, {s(sWS,4)}, 0 offen sc1")
        e("s_waitcnt vmcnt(0)")
        e(f"v_cmp_le_u32 vcc, {phase}, {v(vT)}")
        e(f"s_and_b64 {s(sT,2)}, vcc, {s(sMSK,2)}")
        e(f"s_cmp_eq_u64 {s(sT,2)}, {s(sMSK,2)}")
        e(f"s_cbranch_scc1 {skip}")
        e(f"s_add_u32 {s(sSPIN)}, {s(sSPIN)}, 1")
        e(f"s_cmp_lt_u32 {s(sSPIN)}, {SPIN_MAX}")
        e(f"s_cbranch_scc1 {lp}")
        self.label(skip)
        e("s_barrier")

    def signal(self, phase, tags=0, halo=False):
        e = self.e
        self.wait(vm=tags)
        e("s_barrier")
        skip = self.newlabel("sig_done")
        e(f"s_cmp_lg_u32 {s(sWAVE)}, 0")
        e(f"s_cbranch_scc1 {skip}")
        e(f"v_mov_b32 {v(vT)}, {phase}")
        e("s_mov_b64 exec, 1")
        if halo:
            nh = self.newlabel("nohalo")
            e(f"s_and_b32 {s(sT)}, {s(sRB4)}, 1")
            e(f"s_lshr_b32 {s(sT+1)}, {s(sRB4)}, 1")
            e(f"s_cmp_lg_u32 {s(sT)}, {s(sT+1)}")
            e(f"s_cbranch_scc1 {nh}")
            e(f"s_lshl_b32 {s(sT)}, {s(sT)}, 8")
            e(f"s_lshl_b32 {s(sT+1)}, {s(sSET)}, 9")
            e(f"s_add_u32 {s(sT)}, {s(sT)}, {s(sT+1)}")
            e(f"s_lshl_b32 {s(sT+1)}, {s(sLAYER)}, 13")
            e(f"s_add_u32 {s(sT)}, {s(sT)}, {s(sT+1)}")
            e(f"s_lshl_b32 {s(sT+1)}, {s(sCS)}, 2")
            e(f"s_add_u32 {s(sT)}, {s(sT)}, {s(sT+1)}")
            e(f"s_add_u32 {s(sT)}, {s(sT)}, {HFLAG(0)}")
            e(f"buffer_store_dword {v(vT)}, off, {s(sWS,4)}, {s(sT)} sc1")
            self.label(nh)
        vm0 = list(self.vm)
        self.moded(lambda f: e(f"buffer_store_dword {v(vT)}, off, {s(sWS,4)}, {s(sFLG)}{f}"))
        self.vm = vm0
        e("s_mov_b64 exec, -1")
        self.label(skip)
        assert not self.vm, self.vm

    def setmask(self, bits, smul, mul):
        e = self.e
        e(f"s_mul_i32 {s(sT)}, {s(smul)}, {mul}")
        e(f"s_lshl_b32 {s(sMSK)}, {hex(bits)}, {s(sT)}")
        e(f"s_mov_b32 {s(sMSK+1)}, 0")

    def attention(self):
        e = self.e
        Q, S, T, P, M, XP = V(16), [V(48), V(64)], V(80), V(88), V(96), 100
        O, KV, PK = A(0), A(64), A(128)
        sOFF = sT + 6
        e(f"s_lshl_b32 {s(sT)}, {s(sHEAD)}, 6")
        e(f"s_lshl_b32 {s(sT+1)}, {s(sBLK)}, 2")
        e(f"s_add_u32 {s(sT)}, {s(sT)}, {s(sT+1)}")
        e(f"s_lshl_b32 {s(sT)}, {s(sT)}, 11")
        e(f"s_mul_i32 {s(sT+1)}, {s(sLAYER)}, {QF_L}")
        e(f"s_add_u32 {s(sT)}, {s(sT)}, {s(sT+1)}")
        e(f"s_add_u32 {s(sT)}, {s(sT)}, {QF0}")
        for i in range(4):
            e(f"s_add_u32 {s(sT+1)}, {s(sWAVE)}, {i}")
            e(f"s_and_b32 {s(sT+1)}, {s(sT+1)}, 3")
            e(f"s_lshl_b32 {s(sT+1)}, {s(sT+1)}, 11")
            e(f"s_add_u32 {s(sT+1)}, {s(sT+1)}, {s(sT)}")
            for q in range(2):
                self.vmem(f"buffer_load_dwordx4 {Q(8*i+4*q,4)}, {v(vL16)}, {s(sWS,4)}, {s(sT+1)} offen offset:{1024*q}", "q")
        e(f"s_lshl_b32 {s(sKVB)}, {s(sHEAD)}, 18")
        e(f"s_lshl_b32 {s(sT)}, {s(sWAVE)}, 12")
        e(f"s_add_u32 {s(sKVB)}, {s(sKVB)}, {s(sT)}")
        e(f"s_mul_i32 {s(sT)}, {s(sLAYER)}, {KVF_L}")
        e(f"s_add_u32 {s(sKVB)}, {s(sKVB)}, {s(sT)}")
        e(f"s_add_u32 {s(sKVB)}, {s(sKVB)}, {KVF0}")
        e(f"s_mov_b32 {s(sNP)}, 1")
        retry = "L_attn_retry"
        self.label(retry)
        def ldk(dst, tag, so=sOFF):
            return [(f"buffer_load_dwordx4 {dst(4*q,4)}, {v(vL16)}, {s(sWS,4)}, {s(so)} offen offset:{1024*q}", tag) for q in range(2)]
        def ldv(dst, tag):
            return [(f"buffer_load_dwordx4 {dst(8+4*q,4)}, {v(vL16)}, {s(sWS,4)}, {s(sOFF)} offen offset:{2048+1024*q}", tag) for q in range(2)]
        adv = [(f"s_add_u32 {s(sKV)}, {s(sKV)}, 0x4000", None), (f"s_and_b32 {s(sKV)}, {s(sKV)}, 0x3ffff", None),
               (f"s_add_u32 {s(sOFF)}, {s(sKV)}, {s(sKVB)}", None)]
        e(f"s_lshl_b32 {s(sKV)}, {s(sSET)}, 15")
        e(f"s_add_u32 {s(sOFF)}, {s(sKV)}, {s(sKVB)}")
        for x in ldk(PK, "pk"): self.emit1(x)
        for t in range(4):
            b = KV.at(16 * t)
            for x in ldk(b, f"k{t}"): self.emit1(x)
            if t < 3:
                for x in ldv(b, f"v{t}"): self.emit1(x)
                for x in adv: self.emit1(x)
        e(f"v_mov_b32 {v(vT)}, 0")
        for i in range(64): e(f"v_accvgpr_write_b32 {O(i)}, 0")
        for i in range(4): e(f"v_accvgpr_write_b32 {KV(60+i)}, 0")
        for i in range(8): e(f"v_mov_b32 {P(i)}, 0")
        for i in range(8): e(f"v_mov_b32 {T(i)}, 0")
        for i in range(4): e(f"v_mov_b32 {M(i)}, 0xff800000")
        e(f"s_mov_b32 {s(sCNT)}, 0")
        self.wait(vm="pk")
        self.stamp(1)
        vm_main = list(self.vm)
        pp, ppd = "L_attn_pp", "L_attn_ppd"
        self.label(pp)
        def qk(dst, kf, i):
            self.mfma(dst(0, 16), kf(0, 4), Q(8 * i, 4), "0")
            self.mfma(dst(0, 16), kf(4, 4), Q(8 * i + 4, 4), dst(0, 16))
        def mx(src, i):
            for r in range(8): e(f"v_max3_f32 {M(i)}, {src(2*r)}, {src(2*r+1)}, {M(i)}")
        qk(S[0], PK, 0); qk(S[1], PK, 1)
        self.nop(10)
        mx(S[0], 0); qk(S[0], PK, 2)
        self.nop(2)
        mx(S[1], 1); qk(S[1], PK, 3)
        self.nop(2)
        mx(S[0], 2)
        self.nop(4)
        mx(S[1], 3)
        e(f"s_add_u32 {s(sCNT)}, {s(sCNT)}, 1")
        e(f"s_cmp_ge_u32 {s(sCNT)}, {s(sNP)}")
        e(f"s_cbranch_scc1 {ppd}")
        e(f"s_lshl_b32 {s(sT)}, {s(sCNT)}, 14")
        e(f"s_lshl_b32 {s(sT+1)}, {s(sSET)}, 15")
        e(f"s_add_u32 {s(sT)}, {s(sT)}, {s(sT+1)}")
        e(f"s_and_b32 {s(sT)}, {s(sT)}, 0x3ffff")
        e(f"s_add_u32 {s(sT)}, {s(sT)}, {s(sKVB)}")
        for x in ldk(PK, "pk", sT): e(x[0])
        e("s_waitcnt vmcnt(0)")
        e(f"s_branch {pp}")
        self.label(ppd)
        self.vm = vm_main
        for i in range(4): e(f"v_mov_b32 {v(vT+i)}, {M(i)}")
        self.nop(1)
        for i in range(4): e(f"v_permlane32_swap_b32 {v(vT+i)}, {M(i)}")
        for i in range(4): e(f"v_max_f32 {M(i)}, {M(i)}, {v(vT+i)}")
        for i in range(4): e(f"v_cvt_pk_bf16_f32 {v(vT+i)}, -{M(i)}, 0")
        for i in range(4): e(f"v_lshlrev_b32 {M(i)}, 16, {v(vT+i)}")
        e("s_mov_b32 exec_lo, 0")
        for i in range(4): e(f"v_mov_b32 {Q(8*i+6)}, {v(vT+i)}")
        e("s_mov_b32 exec_lo, -1")
        self.wait(vm="v0")
        e(f"s_mov_b32 {s(sIT)}, 0")
        qk(S[0], KV, 0)
        self.nop(9)
        self.stamp(2)

        def body(it, last, fill):
            fill = list(fill)
            for n in range(16):
                jj, i = n >> 2, n & 3
                cur, nx = S[n & 1], S[(n + 1) & 1]
                kb = KV.at(16 * (((n + 1) >> 2) & 3)); qi = (n + 1) & 3
                pb = KV.at(16 * (((n - 1) >> 2) & 3)); po = (n - 1) & 3
                slots = [[], [], [], []]
                tprev = 4 * it + jj - 1 + 4
                if i == 0 and (not last or jj == 0):
                    x = ldv(KV.at(16 * ((jj - 1) & 3)), f"v{tprev}")
                    slots[2].append(x[0]); slots[3].append(x[1])
                if i == 1 and not last:
                    for q in range(3): slots[q].append(adv[q])
                if i == 2 and not (last and jj == 3):
                    slots[3].append(('WAIT', f"v{4*it+jj+1}"))
                if i == 3 and not last:
                    x = ldk(KV.at(16 * jj), f"k{4*it+jj+4}")
                    slots[0].append(x[0]); slots[1].append(x[1])
                if n == 15 and not last:
                    slots[2].append((f"s_add_u32 {s(sIT)}, {s(sIT)}, 1", None))
                    slots[3].append((f"s_cmp_lt_u32 {s(sIT)}, 3", None))
                if last and n >= 1:
                    for q in range(4):
                        if not slots[q]:
                            for _ in range(2):
                                if fill: slots[q].append(fill.pop(0))
                for g in range(4):
                    if g == 0 and not (last and n == 15): self.mfma(nx(0, 16), kb(0, 4), Q(8 * qi, 4), "0")
                    if g == 1 and not (last and n == 15): self.mfma(nx(0, 16), kb(4, 4), Q(8 * qi + 4, 4), nx(0, 16))
                    if g == 2: self.mfma(O(16 * po, 16), pb(12, 4), P(4, 4), O(16 * po, 16))
                    if g == 3: self.mfma(O(16 * i, 16), KV(16 * jj + 8, 4), P(0, 4), O(16 * i, 16))
                    for x in slots[g]:
                        if x[0] == 'WAIT': self.wait(vm=x[1])
                        else: self.emit1(x)
                    gp = (g - 1) & 3
                    tp = T.at(4 * (gp & 1))
                    if last and n == 15 and g < 2: self.nop(1)
                    e(f"v_cvt_pk_bf16_f32 {P(2*gp)}, {tp(0)}, {tp(1)}")
                    e(f"v_cvt_pk_bf16_f32 {P(2*gp+1)}, {tp(2)}, {tp(3)}")
                    for r in range(4): e(f"v_exp_f32 {T(4*(g&1)+r)}, {cur(4*g+r)}")
            for x in fill: self.emit1(x)

        loop = "L_attn_loop"
        self.label(loop)
        n0 = len(self.lines)
        body(0, False, [])
        ref = self.lines[n0:]
        for it in (1, 2):
            n1 = len(self.lines)
            body(it, False, [])
            assert self.lines[n1:] == ref, "loop body differs between iterations"
            del self.lines[n1:]
        e(f"s_cbranch_scc1 {loop}")
        fill = self.flat(self.dma_g8(sPWO, 448 * 896, 896, sCS, 7, S0, vG8, "wo") +
                         self.dma_g8(sPW1, 448 * 896, 896, sCS, 7, S2, vG8, "w1"))
        body(3, True, fill)
        self.nop(1)
        e(f"v_cvt_pk_bf16_f32 {P(6)}, {T(4)}, {T(5)}")
        e(f"v_cvt_pk_bf16_f32 {P(7)}, {T(6)}, {T(7)}")
        e(f"v_and_b32 {v(vT+5)}, 31, {v(vLANE)}")
        e(f"v_lshlrev_b32 {v(vT+5)}, 2, {v(vT+5)}")
        self.mfma(O(48, 16), KV(60, 4), P(4, 4), O(48, 16))
        e(f"s_lshl_b32 {s(sT+3)}, {s(sSET)}, 8")
        e(f"s_lshl_b32 {s(sT+4)}, {s(sLAYER)}, 12")
        e(f"s_add_u32 {s(sT+3)}, {s(sT+3)}, {s(sT+4)}")
        e(f"s_add_u32 {s(sT+3)}, {s(sT+3)}, {XTAB(0)}")
        self.vmem(f"buffer_load_dword {v(vT+6)}, {v(vT+5)}, {s(sWS,4)}, {s(sT+3)} offen sc1", "xt")
        self.nop(8)
        self.stamp(3)
        ok = "L_attn_ok"
        e(f"s_mov_b32 {s(sT)}, 0")
        e(f"v_mov_b32 {v(vT+4)}, {fx(2.0**30)}")
        for i in range(4): e(f"v_accvgpr_read_b32 {v(vT+i)}, {O(16*i+12)}")
        for i in range(4):
            e(f"v_cmp_nlt_f32 vcc, {v(vT+i)}, {v(vT+4)}")
            e(f"s_or_b32 {s(sT)}, {s(sT)}, vcc_hi")
        e(f"s_cmp_eq_u32 {s(sT)}, 0")
        e(f"s_cbranch_scc1 {ok}")
        e(f"s_cmp_lg_u32 {s(sNP)}, 1")
        e(f"s_cbranch_scc1 {ok}")
        e(f"s_mov_b32 {s(sNP)}, 16")
        e("s_mov_b32 exec_lo, 0")
        for i in range(4): e(f"v_mov_b32 {Q(8*i+6)}, 0")
        e("s_mov_b32 exec_lo, -1")
        e("s_waitcnt vmcnt(0)")
        e(f"s_branch {retry}")
        self.label(ok)
        e("s_mov_b32 exec_lo, 0")
        for i in range(1, 4): e(f"v_accvgpr_write_b32 {O(16*i+13)}, {M(i)}")
        e("s_mov_b32 exec_lo, -1")
        for i in range(1, 4):
            e(f"s_add_u32 {s(sT)}, {s(sWAVE)}, {i}")
            e(f"s_and_b32 {s(sT)}, {s(sT)}, 3")
            e(f"s_mul_i32 {s(sT)}, {s(sT)}, 12288")
            e(f"s_add_u32 {s(sT)}, {s(sT)}, {MISC + (i-1)*4096}")
            e(f"v_add_u32 {v(vT)}, {s(sT)}, {v(vL16)}")
            for q in range(4):
                self.lds(f"ds_write_b128 {v(vT)}, {O(16*i+4*q,4)} offset:{1024*q}", "cw")
        RB, OW = 112, 160
        for i in range(16): e(f"v_accvgpr_read_b32 {v(OW+i)}, {O(i)}")
        e(f"s_mul_i32 {s(sT)}, {s(sWAVE)}, 12288")
        e(f"s_add_u32 {s(sT)}, {s(sT)}, {MISC}")
        e(f"v_add_u32 {v(vT)}, {s(sT)}, {v(vL16)}")
        self.wait(lg=0)
        e("s_barrier")
        for j in range(3):
            for q in (3, 0, 1, 2):
                self.lds(f"ds_read_b128 {v(RB+16*j+4*q,4)}, {v(vT)} offset:{4096*j+1024*q}", f"cr{j}{q}")
        AD = 176
        e(f"s_mul_i32 {s(sT)}, {s(sHEAD)}, 7")
        e(f"v_lshrrev_b32 {v(vT+1)}, 5, {v(vLANE)}")
        e(f"v_add_u32 {v(vT+1)}, {s(sT)}, {v(vT+1)}")
        e(f"v_and_b32 {v(vT+2)}, 31, {v(vLANE)}")
        e(f"v_lshlrev_b32 {v(vT+2)}, 4, {v(vT+2)}")
        e(f"v_and_b32 {v(vT+3)}, 1, {v(vT+1)}")
        e(f"v_lshl_add_u32 {v(vT+2)}, {v(vT+3)}, 9, {v(vT+2)}")
        for q in range(4):
            e(f"v_add_u32 {v(vT+3)}, {2*q}, {v(vT+1)}")
            e(f"v_lshrrev_b32 {v(vT+4)}, 2, {v(vT+3)}")
            e(f"v_lshl_add_u32 {v(AD+q)}, {v(vT+4)}, 10, {v(vT+2)}")
            e(f"v_bfe_u32 {v(vT+4)}, {v(vT+3)}, 1, 1")
            e(f"v_lshl_add_u32 {v(AD+q)}, {v(vT+4)}, 3, {v(AD+q)}")
        e(f"s_lshl_b32 {s(sT+2)}, {s(sBLK)}, 2")
        e(f"s_add_u32 {s(sT+2)}, {s(sT+2)}, {s(sWAVE)}")
        e(f"s_mul_i32 {s(sT+2)}, {s(sT+2)}, {SLOT}")
        e(f"s_add_u32 {s(sT+2)}, {s(sT+2)}, {s(sLB)}")
        if OF: e(f"s_add_u32 {s(sT+2)}, {s(sT+2)}, {OF}")
        mlp, mok = "L_mode_loop", "L_mode_ok"
        e(f"s_mov_b32 {s(sSPIN)}, 0")
        self.wait(vm="xt")
        self.label(mlp)
        e(f"v_cmp_eq_u32 vcc, 0, {v(vT+6)}")
        e(f"s_cmp_eq_u64 vcc, 0")
        e(f"s_cbranch_scc1 {mok}")
        e(f"s_add_u32 {s(sSPIN)}, {s(sSPIN)}, 1")
        e(f"s_cmp_ge_u32 {s(sSPIN)}, {SPIN_MAX}")
        e(f"s_cbranch_scc1 {mok}")
        e(f"buffer_load_dword {v(vT+6)}, {v(vT+5)}, {s(sWS,4)}, {s(sT+3)} offen sc1")
        e("s_waitcnt vmcnt(0)")
        e(f"s_branch {mlp}")
        self.label(mok)
        e(f"v_readfirstlane_b32 {s(sT)}, {v(vT+6)}")
        self.nop(2)
        e(f"v_cmp_ne_u32 vcc, {s(sT)}, {v(vT+6)}")
        e(f"s_mov_b32 {s(sMODE)}, vcc_lo")
        if self.force_slow: e(f"s_mov_b32 {s(sMODE)}, 1")
        NM, F = 180, 184
        self.wait(lg="cr23")
        e(f"v_mov_b32 {v(NM)}, {M(0)}")
        for j in range(3):
            e(f"v_mov_b32 {v(vT+j)}, {v(RB+16*j+13)}")
            e(f"v_mov_b32 {v(NM+1+j)}, {v(RB+16*j+13)}")
        self.nop(1)
        for j in range(3): e(f"v_permlane32_swap_b32 {v(vT+j)}, {v(NM+1+j)}")
        e(f"v_min3_f32 {v(vT+3)}, {v(NM)}, {v(NM+1)}, {v(NM+2)}")
        e(f"v_min_f32 {v(vT+3)}, {v(vT+3)}, {v(NM+3)}")
        for j in range(4): e(f"v_sub_f32 {v(F+j)}, {v(vT+3)}, {v(NM+j)}")
        for j in range(4): e(f"v_exp_f32 {v(F+j)}, {v(F+j)}")
        e(f"v_mul_f32 {v(vT)}, {v(F)}, {v(OW+12)}")
        for j in range(3): e(f"v_fmac_f32 {v(vT)}, {v(F+1+j)}, {v(RB+16*j+12)}")
        e(f"v_mov_b32 {v(vT+1)}, {v(vT)}")
        self.nop(2)
        e(f"v_permlane32_swap_b32 {v(vT+1)}, {v(vT)}")
        e(f"v_rcp_f32 {v(vT)}, {v(vT)}")
        self.nop(1)
        for j in range(4): e(f"v_mul_f32 {v(F+j)}, {v(F+j)}, {v(vT)}")
        for i in range(16): e(f"v_mul_f32 {v(OW+i)}, {v(F)}, {v(OW+i)}")
        self.wait(lg=0)
        for j in range(3):
            for i in range(16): e(f"v_fmac_f32 {v(OW+i)}, {v(F+1+j)}, {v(RB+16*j+i)}")
        self.pack16(RB, OW)
        def st(f):
            for q in range(4):
                if q == 3: e("s_mov_b32 exec_hi, 0")
                self.vmem(f"buffer_store_dwordx2 {v(RB+2*q,2)}, {v(AD+q)}, {s(sWS,4)}, {s(sT+2)} offen{f}", "o")
            e("s_mov_b32 exec_hi, -1")
        self.moded(st)
        self.signal(1)
        self.stamp(4)

    def gelu_stream(self, acc, cs, tmp, dst, vNM, vGA, vGB, vIR):
        out = []
        for g in range(4):
            r = range(4 * g, 4 * g + 4)
            t = lambda i: v(tmp + (i & 3) + 4 * (g & 1))
            for i in r: out.append(f"v_fmac_f32 {v(acc+i)}, {v(vNM)}, {v(cs+i)}")
            for i in r: out.append(f"v_mul_f32 {t(i)}, {v(acc+i)}, {v(acc+i)}")
            for i in r: out.append(f"v_fma_f32 {t(i)}, {t(i)}, {v(vGB)}, {v(vGA)}")
            for i in r: out.append(f"v_mul_f32 {t(i)}, {t(i)}, {v(acc+i)}")
            for i in r: out.append(f"v_exp_f32 {t(i)}, {t(i)}")
            for i in r: out.append(f"v_fma_f32 {t(i)}, {t(i)}, {v(vIR)}, {v(vIR)}")
            for i in r: out.append(f"v_rcp_f32 {t(i)}, {t(i)}")
            for i in r: out.append(f"v_mul_f32 {t(i)}, {t(i)}, {v(acc+i)}")
            for q in range(2): out.append(f"v_cvt_pk_bf16_f32 {v(dst+2*g+q)}, {t(4*g+2*q)}, {t(4*g+2*q+1)}")
        return out
    def gelu_consts(self, vr, vNM, vGA, vGB, vIR):
        e = self.e
        e(f"v_rcp_f32 {v(vIR)}, {v(vr)}")
        e(f"v_mul_f32 {v(vGB)}, {v(vr)}, {v(vr)}")
        e(f"v_mul_f32 {v(vGA)}, {fx(GC0)}, {v(vr)}")
        e(f"v_mul_f32 {v(vGB)}, {v(vGB)}, {v(vr)}")
        e(f"v_mul_f32 {v(vGB)}, {fx(GC1)}, {v(vGB)}")

    def tile_addr(self, sdst, region):
        e = self.e
        e(f"s_mul_i32 {s(sdst)}, {s(sTB)}, {SLOT}")
        e(f"s_lshl_b32 {s(sT+7)}, {s(sNT)}, 11")
        e(f"s_add_u32 {s(sdst)}, {s(sdst)}, {s(sT+7)}")
        e(f"s_add_u32 {s(sdst)}, {s(sdst)}, {s(sLB)}")
        e(f"s_add_u32 {s(sdst)}, {s(sdst)}, {region}")
    def stat_addr(self, sdst, region):
        e = self.e
        e(f"s_lshl_b32 {s(sdst)}, {s(sTB)}, 12")
        e(f"s_lshr_b32 {s(sT+7)}, {s(sNT)}, 2")
        e(f"s_lshl_b32 {s(sT+7)}, {s(sT+7)}, 10")
        e(f"s_add_u32 {s(sdst)}, {s(sdst)}, {s(sT+7)}")
        e(f"s_and_b32 {s(sT+7)}, {s(sNT)}, 3")
        e(f"s_lshl_b32 {s(sT+7)}, {s(sT+7)}, 2")
        e(f"s_add_u32 {s(sdst)}, {s(sdst)}, {s(sT+7)}")
        e(f"s_add_u32 {s(sdst)}, {s(sdst)}, {s(sLB)}")
        e(f"s_add_u32 {s(sdst)}, {s(sdst)}, {region}")
    def keep_send_addr(self, lds, khstride):
        e = self.e
        e(f"s_mul_i32 {s(sT)}, {s(sKH)}, {khstride + 512}")
        e(f"s_add_u32 {s(sT)}, {s(sT)}, {lds}")
        e(f"v_add_u32 {v(vA0)}, {s(sT)}, {v(vTR)}")
        e(f"v_xor_b32 {v(vA1)}, 512, {v(vA0)}")
    def exchange(self, keep, send, recv):
        e = self.e
        e(f"s_lshl_b32 {s(sT)}, {s(sWAVE)}, 12")
        e(f"s_add_u32 {s(sT)}, {s(sT)}, {XCH}")
        e(f"v_add_u32 {v(vT)}, {s(sT)}, {v(vL16)}")
        e(f"v_xor_b32 {v(vT+1)}, 0x2000, {v(vT)}")
        self.nop(7)
        for q in range(4): self.lds(f"ds_write_b128 {v(vT)}, {v(send+4*q,4)} offset:{1024*q}", "xw")
        self.wait(lg=0)
        e("s_barrier")
        for q in range(4): self.lds(f"ds_read_b128 {v(recv+4*q,4)}, {v(vT+1)} offset:{1024*q}", f"xr{q}")
    def exchange_add(self, keep, recv):
        for q in range(4):
            self.wait(lg=f"xr{q}")
            for i in range(4): self.e(f"v_add_f32 {v(keep+4*q+i)}, {v(keep+4*q+i)}, {v(recv+4*q+i)}")

    def small(self, kind):
        e = self.e
        B, AF = A(0), A(128)
        K_, S_, RV, STT, CS, TMP, PKD = 32, 48, 64, 80, 96, 112, 144
        lds = {'wo': S0, 'w1': S2, 'w2': S0}[kind]
        ph = {'wo': 1, 'w1': 2, 'w2': 3}[kind]
        st0 = {'wo': 5, 'w1': 7, 'w2': 9}[kind]
        self.c(f"================ {kind}")
        assert XCH % 0x4000 == 0
        self.keep_send_addr(lds, SLOT)
        if kind == 'w1':
            e(f"s_lshl_b32 {s(sT)}, {s(sWAVE)}, 9")
            e(f"s_add_u32 {s(sT)}, {s(sT)}, {lds}")
            e(f"v_add_u32 {v(vT+2)}, {s(sT)}, {v(vTR)}")
            self.colsum(2, vT + 2, 2048, 1024)
        src = {'wo': OF, 'w1': XA, 'w2': HF}[kind]
        if kind != 'w2':
            e(f"s_mul_i32 {s(sT+2)}, {s(sTB)}, {SLOT}")
            e(f"s_mul_i32 {s(sT+3)}, {s(sKH)}, 14336")
            e(f"s_add_u32 {s(sT+2)}, {s(sT+2)}, {s(sT+3)}")
            e(f"s_add_u32 {s(sT+2)}, {s(sT+2)}, {s(sLB)}")
            if src: e(f"s_add_u32 {s(sT+2)}, {s(sT+2)}, {src}")
            e(f"v_add_u32 {v(vT+3)}, {s(sT+2)}, {v(vL16)}")
            vB = [vT + 3, vT + 3]
        else:
            vB = [vT + 3, vT + 4]
            e(f"s_mul_i32 {s(sT+3)}, {s(sKH)}, 14336")
            e(f"s_add_u32 {s(sT+3)}, {s(sT+3)}, {s(sLB)}")
            e(f"s_add_u32 {s(sT+3)}, {s(sT+3)}, {HF}")
            e(f"s_lshl_b32 {s(sT+2)}, {s(sTB)}, 5")
            e(f"s_add_u32 {s(sT+4)}, {s(sKH)}, 1")
            e(f"s_mov_b32 {s(sT+5)}, {SLOT}")
            for d in range(2):
                e(f"v_and_b32 {v(vT)}, 31, {v(vLANE)}")
                e(f"v_add_u32 {v(vT)}, {s(sT+2)}, {v(vT)}")
                e(f"v_{'subrev' if d == 0 else 'add'}_u32 {v(vT)}, {s(sT+4)}, {v(vT)}")
                e(f"v_lshrrev_b32 {v(vT+1)}, 5, {v(vT)}")
                e(f"v_mul_lo_u32 {v(vB[d])}, {v(vT+1)}, {s(sT+5)}")
                e(f"v_and_b32 {v(vT+1)}, 31, {v(vT)}")
                e(f"v_lshl_add_u32 {v(vB[d])}, {v(vT+1)}, 4, {v(vB[d])}")
                e(f"v_and_b32 {v(vT+1)}, 512, {v(vL16)}")
                e(f"v_add3_u32 {v(vB[d])}, {v(vB[d])}, {v(vT+1)}, {s(sT+3)}")
                e(f"v_lshrrev_b32 {v(vT+1)}, 8, {v(vT)}")
                e(f"v_cmp_ne_u32 vcc, {s(sSET)}, {v(vT+1)}")
                e(f"v_add_u32 {v(vT+1)}, {HF2-HF}, {v(vB[d])}")
                self.nop(1)
                e(f"v_cndmask_b32 {v(vB[d])}, {v(vB[d])}, {v(vT+1)}, vcc")
                e(f"v_cmp_lt_u32 vcc, 0x7ff, {v(vT)}")
                e(f"v_bfrev_b32 {v(vT+1)}, 1")
                self.nop(1)
                e(f"v_cndmask_b32 {v(vB[d])}, {v(vB[d])}, {v(vT+1)}, vcc")
        if kind == 'wo':
            e(f"s_lshr_b32 {s(sT+1)}, {s(sRB4)}, 1")
            self.setmask(0xffff, sT + 1, 16)
        elif kind == 'w1':
            self.setmask(0x7f, sRB4, 7)
        else:
            e(f"s_mul_i32 {s(sT)}, {s(sRB4)}, 7")
            e(f"s_mov_b32 {s(sMSK)}, 0x1fffff")
            e(f"s_mov_b32 {s(sMSK+1)}, 0")
            e(f"s_lshl_b64 {s(sMSK,2)}, {s(sMSK,2)}, {s(sT)}")
            e(f"s_lshr_b64 {s(sMSK,2)}, {s(sMSK,2)}, 7")
            e(f"s_and_b32 {s(sMSK)}, {s(sMSK)}, 0xfffffff")
            e(f"s_mov_b32 {s(sMSK+1)}, {s(sHM)}")
        def aread(q):
            out = []
            for t in range(2):
                b = AF.at(8 * (q % 3) + 4 * t)
                out.append((f"ds_read_b64_tr_b16 {b(0,2)}, {v([vA0,vA1][t])} offset:{q*2048}", f"lds:a{q}"))
                out.append((f"ds_read_b64_tr_b16 {b(2,2)}, {v([vA0,vA1][t])} offset:{q*2048+1024}", f"lds:a{q}"))
            return out
        for q in range(2):
            for x in aread(q): self.emit1(x)
        self.poll(ph)
        self.stamp(st0)
        for q in range(14):
            self.vmem(f"buffer_load_dwordx4 {B(4*q,4)}, {v(vB[q//7])}, {s(sWS,4)}, {self.c4(q//4)} offen offset:{1024*(q%4)} sc1", f"b{q}")
        if kind == 'w1': self.stats_load(STT, STA, sTB)
        for q in range(14):
            self.wait(vm=f"b{q}", lg=f"a{q}")
            nxt = aread(q + 2) if q + 2 < 14 else []
            for t in (1, 0):
                acc = v([K_, S_][t], 16)
                self.mfma(acc, AF(8 * (q % 3) + 4 * t, 4), B(4 * q, 4), "0" if q == 0 else acc)
                for x in nxt[2 * (1 - t):2 * (1 - t) + 2]: self.emit1(x)
        self.exchange(K_, S_, RV)
        if kind == 'wo':
            dma = self.dma_g8(sPW2, 448 * 896, 896, sCS, 7, S0, vG8, "w2")
        elif kind == 'w1':
            self.lane_g8(vT + 5, 3584)
            self.lane_t32(vT + 6, 3584)
            dma = self.dma_g8(sPW3, 448 * 3584, 3584, sFS, 8, S2, vT + 5, "w3a") + \
                  self.dma_t32(sPW3, 448 * 3584, 3584, sFS, 256, 128, S4, vT + 6, "w3b")
        else:
            self.lane_t32(vT + 6, 3584)
            dma = self.dma_t32(sPW3, 448 * 3584, 3584, sFS, 256, 192, S0, vT + 6, "w3c") + self.dma_w4chunk(0, S1, "c0")
        if kind == 'w2': self.emit_items(dma)
        if kind == 'wo':
            XP = 100
            for i in range(8):
                e(f"v_lshlrev_b32 {v(vX+2*i)}, 16, {v(XP+i)}")
                e(f"v_and_b32 {v(vX+2*i+1)}, 0xffff0000, {v(XP+i)}")
            self.tile_addr(sT + 2, XA); self.stat_addr(sT + 3, STA)
            self.exchange_add(K_, RV)
            for i in range(16): e(f"v_add_f32 {v(vX+i)}, {v(vX+i)}, {v(K_+i)}")
            self.pack16(PKD, vX)
            self.stats_partial(vX, TMP)
        elif kind == 'w1':
            self.read_cs(CS, sKH, 0)
            self.wait(vm="st")
            self.stats_sum(STT)
            self.stats_finish(STT, STT + 1)
            vNM, vGA, vGB, vIR, vRR = STT + 2, STT + 3, STT + 4, STT + 5, STT + 6
            e(f"v_add_f32 {v(vRR)}, {fx(EPS)}, {v(STT+1)}")
            e(f"v_rsq_f32 {v(vR1)}, {v(vRR)}")
            e(f"v_sub_f32 {v(vNM)}, 0, {v(vMEAN)}")
            e(f"v_mul_f32 {v(vRR)}, {v(vR1)}, {v(vR1)}")
            e(f"v_mov_b32 {v(vGA)}, {fx(EPS)}")
            e(f"v_fmac_f32 {v(vGA)}, {v(vRR)}, {v(STT+1)}")
            e(f"v_rsq_f32 {v(vRR)}, {v(vGA)}")
            self.nop(1)
            e(f"v_mul_f32 {v(vRR)}, {v(vRR)}, {v(vR1)}")
            self.gelu_consts(vRR, vNM, vGA, vGB, vIR)
            self.tile_addr(sT + 2, HF)
            self.exchange_add(K_, RV)
            self.wait(lg=0)
            for x in self.gelu_stream(K_, CS, TMP, PKD, vNM, vGA, vGB, vIR): e(x)
        else:
            e(f"v_mul_f32 {v(TMP)}, {v(vMEAN)}, {v(vR1)}")
            self.tile_addr(sT + 2, X1); self.stat_addr(sT + 3, ST1)
            self.exchange_add(K_, RV)
            for i in range(16): e(f"v_fmac_f32 {v(K_+i)}, {v(vX+i)}, {v(vR1)}")
            for i in range(16): e(f"v_sub_f32 {v(K_+i)}, {v(K_+i)}, {v(TMP)}")
            self.pack16(PKD, K_)
            for i in range(16): e(f"v_add_f32 {v(vX+i)}, {v(vX+i)}, {v(K_+i)}")
            self.stats_partial(K_, TMP)
        if kind == 'w1':
            nh = self.newlabel("nohalo")
            e(f"s_lshl_b32 {s(sT)}, {s(sRB4)}, 1")
            e(f"s_add_u32 {s(sT)}, {s(sT)}, {s(sTT)}")
            e(f"s_cmp_eq_u32 {s(sT)}, 0")
            e(f"s_cselect_b32 {s(sT+1)}, 3, 0")
            e(f"s_cmp_eq_u32 {s(sT)}, 7")
            e(f"s_cselect_b32 {s(sT+1)}, 0xc0000000, {s(sT+1)}")
            e(f"s_cmp_eq_u32 {s(sT+1)}, 0")
            e(f"s_cbranch_scc1 {nh}")
            e(f"s_mov_b32 exec_lo, {s(sT+1)}")
            e(f"s_mov_b32 exec_hi, {s(sT+1)}")
            e(f"s_add_u32 {s(sT+3)}, {s(sT+2)}, {HF2-HF}")
            for q in range(2):
                e(f"buffer_store_dwordx4 {v(PKD+4*q,4)}, {v(vL16)}, {s(sWS,4)}, {s(sT+3)} offen offset:{1024*q} sc1")
            e("s_mov_b64 exec, -1")
            self.label(nh)
        def st(f):
            for q in range(2):
                self.vmem(f"buffer_store_dwordx4 {v(PKD+4*q,4)}, {v(vL16)}, {s(sWS,4)}, {s(sT+2)} offen offset:{1024*q}{f}", "o")
            if kind != 'w1':
                self.vmem(f"buffer_store_dword {v(TMP)}, {v(vL16)}, {s(sWS,4)}, {s(sT+3)} offen{f}", "o")
        self.moded(st)
        self.signal(ph + 1, halo=(kind == 'w1'))
        if kind != 'w2': self.emit_items(dma)
        self.stamp(st0 + 1)

    def w3(self):
        e = self.e
        self.c("================ w3")
        B, AF = A(0), A(128)
        ACC = [32, 48, 64, 80]
        CS, STT, TMP, PKD = [96, 112], 128, 144, [160, 168]
        e(f"s_lshl_b32 {s(sT)}, {s(sWAVE)}, 9")
        e(f"s_add_u32 {s(sT)}, {s(sT)}, {S2}")
        e(f"v_add_u32 {v(vT+2)}, {s(sT)}, {v(vTR)}")
        self.colsum(2, vT + 2, 2048, 1024)
        lab = self.newlabel("cs23")
        e(f"s_cmp_lt_u32 {s(sWAVE)}, 2")
        e(f"s_cbranch_scc1 {lab}")
        e(f"s_cmp_eq_u32 {s(sWAVE)}, 2")
        e(f"s_cselect_b32 {s(sT)}, {S4}, {S0}")
        e(f"v_add_u32 {v(vT+2)}, {s(sT)}, {v(vTR)}")
        self.colsum(4, vT + 2, 1024, 512)
        self.label(lab)
        e(f"v_add_u32 {v(vA0)}, {S2}, {v(vTR)}")
        e(f"v_add_u32 {v(vA1)}, {S4}, {v(vTR)}")
        e(f"s_lshl_b32 {s(sT+2)}, {s(sSET)}, 3")
        e(f"s_lshl_b32 {s(sT+3)}, {s(sRB2)}, 2")
        e(f"s_add_u32 {s(sT+2)}, {s(sT+2)}, {s(sT+3)}")
        e(f"s_add_u32 {s(sT+6)}, {s(sT+2)}, {s(sWAVE)}")
        e(f"s_mul_i32 {s(sT+2)}, {s(sT+6)}, {SLOT}")
        e(f"s_add_u32 {s(sT+2)}, {s(sT+2)}, {s(sLB)}")
        e(f"s_add_u32 {s(sT+2)}, {s(sT+2)}, {X1}")
        e(f"v_add_u32 {v(vT+3)}, {s(sT+2)}, {v(vL16)}")
        e(f"s_mul_i32 {s(sT+5)}, {s(sT+6)}, {112*1024}")
        e(f"s_lshl_b32 {s(sT+3)}, {s(sFS)}, 13")
        e(f"s_add_u32 {s(sT+5)}, {s(sT+5)}, {s(sT+3)}")
        e(f"s_add_u32 {s(sT+5)}, {s(sT+5)}, {s(sLB)}")
        e(f"s_add_u32 {s(sT+5)}, {s(sT+5)}, {HH}")
        e(f"v_add_u32 {v(vT+4)}, {s(sT+5)}, {v(vL16)}")
        self.setmask(0x3fff, sRB2, 14)
        def aread01(q):
            out = []
            for t in range(2):
                b = AF.at(8 * (q % 3) + 4 * t)
                out.append((f"ds_read_b64_tr_b16 {b(0,2)}, {v(vA0)} offset:{q*2048+512*t}", f"lds:a{q}"))
                out.append((f"ds_read_b64_tr_b16 {b(2,2)}, {v(vA0)} offset:{q*2048+512*t+1024}", f"lds:a{q}"))
            return out
        NB = 5
        def aread1(t, q):
            b = AF.at(24 + 4 * ((q + 28 * t) % NB))
            va = vA1 if t == 2 else vTR
            return [(f"ds_read_b64_tr_b16 {b(0,2)}, {v(va)} offset:{q*1024}", f"lds:t{t}_{q}"),
                    (f"ds_read_b64_tr_b16 {b(2,2)}, {v(va)} offset:{q*1024+512}", f"lds:t{t}_{q}")]
        for q in range(2):
            for x in aread01(q): self.emit1(x)
        self.poll(4)
        self.stamp(11)
        self.stats_load(STT, ST1, sT + 6)
        for q in range(28):
            self.vmem(f"buffer_load_dwordx4 {B(4*q,4)}, {v(vT+3)}, {s(sWS,4)}, {self.c4(q//4)} offen offset:{1024*(q%4)} sc1", f"b{q}")
        vNM, vGA, vGB, vIR, vRR = STT + 2, STT + 3, STT + 4, STT + 5, STT + 6
        for q in range(28):
            self.wait(vm=f"b{q}", lg=f"a{q}")
            if q + 2 < 28: nxt = aread01(q + 2)
            else: nxt = aread1(2, 2 * (q - 26)) + aread1(2, 2 * (q - 26) + 1)
            for t in range(2):
                acc = v(ACC[t], 16)
                self.mfma(acc, AF(8 * (q % 3) + 4 * t, 4), B(4 * q, 4), "0" if q == 0 else acc)
                for x in nxt[2 * t:2 * t + 2]: self.emit1(x)
            if q == 4:
                mean_save = vMEAN
                self.stats_sum(STT)
                e(f"v_mov_b32 {v(STT+7)}, {v(vMEAN)}")
                self.stats_finish(STT, STT + 1)
                e(f"v_add_f32 {v(vRR)}, {fx(EPS)}, {v(STT+1)}")
                e(f"v_rsq_f32 {v(vRR)}, {v(vRR)}")
                e(f"v_sub_f32 {v(vNM)}, 0, {v(vMEAN)}")
                self.gelu_consts(vRR, vNM, vGA, vGB, vIR)
            if q == 10: self.read_cs(CS[0], None, 0)
            if q == 14: self.read_cs(CS[1], None, 1)
        e("s_barrier")
        dq = self.flat(self.dma_w4chunk(1, S2, "c1") + self.dma_w4chunk(2, S3, "c2"))
        def store(t):
            def f_(f):
                for q in range(2):
                    off = 2048 * t + 1024 * q
                    self.vmem(f"buffer_store_dwordx4 {v(PKD[t&1]+4*q,4)}, {v(vT+4)}, {s(sWS,4)}, {self.c4(off//4096)} offen offset:{off%4096}{f}", "o")
            self.moded(f_)
        LA = 4
        for t in (2, 3):
            g = self.gelu_stream(ACC[t - 2], CS[t & 1], TMP, PKD[t & 1], vNM, vGA, vGB, vIR)
            per = 5
            for q in range(28):
                self.wait(lg=f"t{t}_{q}")
                acc = v(ACC[t], 16)
                self.mfma(acc, AF(24 + 4 * ((q + 28 * t) % NB), 4), B(4 * q, 4), "0" if q == 0 else acc)
                if q + LA < 28: nxt = aread1(t, q + LA)
                elif t == 2: nxt = aread1(3, q + LA - 28)
                else: nxt = []
                for x in nxt: self.emit1(x)
                for _ in range(2):
                    if dq: self.emit1(dq.pop(0))
                if q >= 2:
                    for _ in range(per + (1 if q % 4 == 0 else 0)):
                        if g: e(g.pop(0))
            for x in g: e(x)
            for x in dq: self.emit1(x)
            store(t - 2)
            self.read_cs(CS[t & 1], None, t)
            e("s_barrier")
            dq = self.flat(self.dma_w4chunk(3, S4, "c3") if t == 2 else self.dma_w4chunk(4, S0, "c4"))
        for x in dq: self.emit1(x)
        self.wait(lg=0)
        for t in (2, 3):
            for x in self.gelu_stream(ACC[t], CS[t & 1], TMP, PKD[t & 1], vNM, vGA, vGB, vIR): e(x)
            store(t)
        self.signal(5)
        self.stamp(12)

    def w4(self):
        e = self.e
        self.c("================ w4")
        B, AF = A(0), A(128)
        K_, S_, RV, TMP, PKD = 32, 48, 64, 112, 144
        slots = [S1, S2, S3, S4, S0, S1, S2, S3]
        AD = 80
        self.keep_send_addr(0, 14336)
        sl = {S0: 0, S1: 1, S2: 2, S3: 3, S4: 4}
        for b_, i in sl.items():
            e(f"v_add_u32 {v(AD+2*i)}, {b_}, {v(vA0)}")
            e(f"v_add_u32 {v(AD+2*i+1)}, {b_}, {v(vA1)}")
        e(f"s_mul_i32 {s(sT+2)}, {s(sTB)}, {112*1024}")
        e(f"s_mul_i32 {s(sT+3)}, {s(sKH)}, {56*1024}")
        e(f"s_add_u32 {s(sT+2)}, {s(sT+2)}, {s(sT+3)}")
        e(f"s_add_u32 {s(sT+2)}, {s(sT+2)}, {s(sLB)}")
        e(f"s_add_u32 {s(sT+2)}, {s(sT+2)}, {HH}")
        e(f"v_add_u32 {v(vT+3)}, {s(sT+2)}, {v(vL16)}")
        e(f"v_add_u32 {v(vT+4)}, {28*1024}, {v(vT+3)}")
        self.lane_t32(vT + 6, 2688)
        self.setmask(0x3fff, sRB2, 14)
        def aread(q):
            c, r = divmod(q, 7)
            i = sl[slots[c]]
            out = []
            for t in range(2):
                b = AF.at(8 * (q % 3) + 4 * t)
                out.append((f"ds_read_b64_tr_b16 {b(0,2)}, {v(AD+2*i+t)} offset:{r*2048}", f"lds:a{q}"))
                out.append((f"ds_read_b64_tr_b16 {b(2,2)}, {v(AD+2*i+t)} offset:{r*2048+1024}", f"lds:a{q}"))
            return out
        def bload(q):
            r = q % 28
            return (f"buffer_load_dwordx4 {B(4*r,4)}, {v(vT+3+q//28)}, {s(sWS,4)}, {self.c4(r//4)} offen offset:{1024*(r%4)} sc1", f"b{q}")
        for q in range(2):
            for x in aread(q): self.emit1(x)
        self.poll(5)
        self.stamp(13)
        for q in range(28): self.emit1(bload(q))
        dq = []
        for q in range(56):
            c, r = divmod(q, 7)
            if r == 4 and 1 <= c <= 6:
                for x in dq: self.emit1(x)
                if c + 1 >= 5: self.wait(vm=f"c{c+1}")
                e("s_barrier")
                if c <= 3: dq = self.flat(self.dma_w4chunk(c + 4, slots[c + 4], f"c{c+4}"))
                else: dq = self.flat(self.dma_wqkv(c - 4, vT + 6))
            self.wait(vm=f"b{q}", lg=f"a{q}")
            nxt = aread(q + 2) if q + 2 < 56 else []
            for t in (1, 0):
                acc = v([K_, S_][t], 16)
                self.mfma(acc, AF(8 * (q % 3) + 4 * t, 4), B(4 * (q % 28), 4), "0" if q == 0 else acc)
                for x in nxt[2 * (1 - t):2 * (1 - t) + 2]: self.emit1(x)
                for _ in range(3):
                    if dq: self.emit1(dq.pop(0))
            if q < 28: self.emit1(bload(q + 28))
        for x in dq: self.emit1(x)
        self.exchange(K_, S_, RV)
        self.tile_addr(sT + 2, XF); self.stat_addr(sT + 3, STF)
        self.exchange_add(K_, RV)
        for i in range(16): e(f"v_add_f32 {v(vX+i)}, {v(vX+i)}, {v(K_+i)}")
        self.pack16(PKD, vX)
        fin = "L_final"
        e(f"s_cmp_lg_u32 {s(sLAYER)}, 0")
        e(f"s_cbranch_scc1 {fin}")
        self.stats_partial(vX, TMP)
        def st(f):
            for q in range(2):
                self.vmem(f"buffer_store_dwordx4 {v(PKD+4*q,4)}, {v(vL16)}, {s(sWS,4)}, {s(sT+2)} offen offset:{1024*q}{f}", "o")
            self.vmem(f"buffer_store_dword {v(TMP)}, {v(vL16)}, {s(sWS,4)}, {s(sT+3)} offen{f}", "o")
        self.moded(st)
        self.signal(6)
        self.stamp(14)
        return PKD

    def kernel23(self):
        e = self.e
        self.begin("k2_kernel")
        e(f"s_mov_b32 {s(sLAYER)}, 0")
        e("s_branch L_main")
        self.begin("k3_kernel")
        e(f"s_mov_b32 {s(sLAYER)}, 1")
        self.label("L_main")
        self.setup("L_done")
        e(f"s_mul_i32 {s(sRB4)}, {s(sR)}, 37")
        e(f"s_lshr_b32 {s(sRB4)}, {s(sRB4)}, 8")
        e(f"s_mul_i32 {s(sT)}, {s(sRB4)}, 7")
        e(f"s_sub_u32 {s(sCS)}, {s(sR)}, {s(sT)}")
        e(f"s_lshr_b32 {s(sRB2)}, {s(sRB4)}, 1")
        e(f"s_mul_i32 {s(sT)}, {s(sRB2)}, 14")
        e(f"s_sub_u32 {s(sFS)}, {s(sR)}, {s(sT)}")
        e(f"s_and_b32 {s(sTT)}, {s(sWAVE)}, 1")
        e(f"s_lshr_b32 {s(sKH)}, {s(sWAVE)}, 1")
        e(f"s_lshl_b32 {s(sTB)}, {s(sSET)}, 3")
        e(f"s_lshl_b32 {s(sT)}, {s(sRB4)}, 1")
        e(f"s_add_u32 {s(sTB)}, {s(sTB)}, {s(sT)}")
        e(f"s_add_u32 {s(sTB)}, {s(sTB)}, {s(sTT)}")
        e(f"s_lshl_b32 {s(sNT)}, {s(sCS)}, 1")
        e(f"s_add_u32 {s(sNT)}, {s(sNT)}, {s(sKH)}")
        e(f"s_mul_i32 {s(sLB)}, {s(sLAYER)}, {LB_L}")
        e(f"s_add_u32 {s(sLB)}, {s(sLB)}, {LB0}")
        e(f"s_lshl_b32 {s(sT)}, {s(sLAYER)}, 12")
        e(f"s_lshl_b32 {s(sT+1)}, {s(sSET)}, 8")
        e(f"s_add_u32 {s(sT)}, {s(sT)}, {s(sT+1)}")
        e(f"s_lshl_b32 {s(sT+1)}, {s(sR)}, 2")
        e(f"s_add_u32 {s(sFLG)}, {s(sT)}, {s(sT+1)}")
        e(f"s_mov_b32 {s(sMODE)}, 1")
        lab = self.newlabel("pub")
        e(f"s_cmp_lg_u32 {s(sWAVE)}, 0")
        e(f"s_cbranch_scc1 {lab}")
        e(f"s_getreg_b32 {s(sT+2)}, hwreg(HW_REG_XCC_ID, 0, 4)")
        e(f"s_add_u32 {s(sT+2)}, {s(sT+2)}, 1")
        e(f"v_mov_b32 {v(vT)}, {s(sT+2)}")
        e(f"s_add_u32 {s(sT+2)}, {s(sFLG)}, {XTAB(0)}")
        e("s_mov_b64 exec, 1")
        e(f"buffer_store_dword {v(vT)}, off, {s(sWS,4)}, {s(sT+2)} sc1")
        e("s_mov_b64 exec, -1")
        self.label(lab)
        e(f"s_cmp_eq_u32 {s(sRB4)}, 0")
        e(f"s_cselect_b32 {s(sT+1)}, 7, 1")
        e(f"s_cselect_b32 {s(sT+2)}, 256, 0")
        e(f"s_add_u32 {s(sT+1)}, {s(sT+1)}, {s(sSET)}")
        e(f"s_and_b32 {s(sT+1)}, {s(sT+1)}, 7")
        e(f"s_lshl_b32 {s(sT+1)}, {s(sT+1)}, 9")
        e(f"s_add_u32 {s(sT+1)}, {s(sT+1)}, {s(sT+2)}")
        e(f"s_lshl_b32 {s(sT+2)}, {s(sLAYER)}, 13")
        e(f"s_add_u32 {s(sT+1)}, {s(sT+1)}, {s(sT+2)}")
        e(f"s_add_u32 {s(sT+1)}, {s(sT+1)}, {HFLAG(0)}")
        e(f"v_and_b32 {v(vPOLL)}, 31, {v(vLANE)}")
        e(f"v_lshlrev_b32 {v(vPOLL)}, 2, {v(vPOLL)}")
        e(f"v_mov_b32 {v(vT)}, {s(sT)}")
        e("s_mov_b32 exec_lo, 0")
        e(f"v_mov_b32 {v(vT)}, {s(sT+1)}")
        e("s_mov_b32 exec_lo, -1")
        e(f"v_add_u32 {v(vPOLL)}, {v(vPOLL)}, {v(vT)}")
        e(f"s_lshl_b32 {s(sT)}, {s(sSET)}, 2")
        e(f"s_add_u32 {s(sT)}, {s(sT)}, {s(sRB4)}")
        e(f"s_mov_b32 {s(sHM)}, 0")
        e(f"s_cmp_eq_u32 {s(sRB4)}, 0")
        e(f"s_cselect_b32 {s(sHM)}, 0x7f, {s(sHM)}")
        e(f"s_cmp_eq_u32 {s(sRB4)}, 3")
        e(f"s_cselect_b32 {s(sHM)}, 0x7f, {s(sHM)}")
        e(f"s_cmp_eq_u32 {s(sT)}, 0")
        e(f"s_cselect_b32 {s(sHM)}, 0, {s(sHM)}")
        e(f"s_cmp_eq_u32 {s(sT)}, 31")
        e(f"s_cselect_b32 {s(sHM)}, 0, {s(sHM)}")
        self.lane_g8(vG8, 896)
        self.srd(sX, sPX, 2048 * 896)
        XP = 100
        l1, l2 = self.newlabel("xo1"), self.newlabel("xo2")
        e(f"s_cmp_lg_u32 {s(sLAYER)}, 0")
        e(f"s_cbranch_scc1 {l1}")
        self.rowmajor_addr(vT + 1)
        for q in range(4):
            self.vmem(f"buffer_load_dwordx2 {v(XP+2*q,2)}, {v(vT+1)}, {s(sX,4)}, {s(sT)} offen offset:{16*q}", "xo")
        e(f"s_branch {l2}")
        self.label(l1)
        self.tile_addr(sT, XF)
        e(f"s_sub_u32 {s(sT)}, {s(sT)}, {LB_L}")
        for q in range(4):
            e(f"buffer_load_dwordx2 {v(XP+2*q,2)}, {v(vL16)}, {s(sWS,4)}, {s(sT)} offen offset:{1024*(q>>1)+8*(q&1)}")
        self.label(l2)
        self.attention()
        if self.stop == 'attn':
            e("s_branch L_end")
        idle = "L_idle"
        e(f"s_cmp_ge_u32 {s(sR)}, 28")
        e(f"s_cbranch_scc1 {idle}")
        for k in ('wo', 'w1', 'w2'):
            self.small(k)
            if self.stop == k: e("s_branch L_end")
        self.w3()
        if self.stop == 'w3': e("s_branch L_end")
        PKD = self.w4()
        e("s_branch L_qkv")
        self.label(idle)
        e(f"s_cmp_lg_u32 {s(sLAYER)}, 0")
        e(f"s_cbranch_scc1 L_end")
        self.lane_t32(vT + 6, 2688)
        for w_ in range(3): self.emit_items(self.dma_wqkv(w_, vT + 6))
        self.wait(vm=0)
        e("s_barrier")
        self.label("L_qkv")
        self.qkv(False)
        e("s_branch L_end")
        self.label("L_final")
        self.srd(sX, sPOUT, 2048 * 896)
        self.rowmajor_addr(vT + 1)
        for q in range(4):
            e(f"buffer_store_dwordx2 {v(PKD+2*q,2)}, {v(vT+1)}, {s(sX,4)}, {s(sT)} offen offset:{16*q}")
        self.stamp(14)
        self.label("L_end")
        self.dump_stamps(None)
        self.label("L_done")
        e("s_endpgm")

    def rowmajor_addr(self, dst):
        e = self.e
        e(f"v_and_b32 {v(vT)}, 31, {v(vLANE)}")
        e(f"v_mul_u32_u24 {v(dst)}, 896, {v(vT)}")
        e(f"v_lshrrev_b32 {v(vT)}, 5, {v(vLANE)}")
        e(f"v_lshl_add_u32 {v(dst)}, {v(vT)}, 3, {v(dst)}")
        e(f"s_mul_i32 {s(sT)}, {s(sTB)}, {32*896}")
        e(f"s_lshl_b32 {s(sT+1)}, {s(sNT)}, 6")
        e(f"s_add_u32 {s(sT)}, {s(sT)}, {s(sT+1)}")

sTB, sNT, sHM = 100, 101, 83

def build(stamps=False, stop=None, force_slow=False, launches=3, extra_empty=0):
    g = Gen2(stamps, stop)
    g.force_slow = force_slow
    hdr = open('cdna_kernels/' + NAME + '.s.ref').read().split('\n')
    hdr = [l for l in hdr if l.startswith(';') and 'launch' not in l.lower()]
    out = "\n".join(hdr[:12]) + "\n"
    ks = ["k1_kernel", "k2_kernel", "k3_kernel"][:launches]
    for k in ks:
        out += f"; @launch kernel={k} grid=(256,1,1) block=(256,1,1) lds={LDS_BYTES}\n"
    for i in range(extra_empty):
        out += f"; @launch kernel=k0_kernel grid=(256,1,1) block=(256,1,1) lds=0\n"
    out += '.amdgcn_target "amdgcn-amd-amdhsa--gfx950"\n.text\n'
    g.kernel1()
    g.kernel23()
    names = ["k1_kernel", "k2_kernel", "k3_kernel"]
    if extra_empty:
        g.begin("k0_kernel"); g.e("s_endpgm"); names.append("k0_kernel")
    out += g.text()
    out += '.section .rodata,"a"\n'
    for k in names:
        out += ".p2align 6\n" + descriptor(k)
    return out

if __name__ == '__main__':
    import argparse, lint
    ap = argparse.ArgumentParser()
    ap.add_argument('-o', default='cdna_kernels/' + NAME + '.s')
    ap.add_argument('--stamps', action='store_true')
    ap.add_argument('--stop')
    ap.add_argument('--slow', action='store_true')
    ap.add_argument('--launches', type=int, default=3)
    ap.add_argument('--empty', type=int, default=0)
    a_ = ap.parse_args()
    txt = build(a_.stamps, a_.stop, a_.slow, a_.launches, a_.empty)
    open(a_.o, 'w').write(txt)
    errs = lint.lint(txt)
    for x in errs: print(x)
    print(len(errs), "hazards;", txt.count('\n'), "lines")
```

```python
import re

def v(i, n=1):
    return f"v{i}" if n == 1 else f"v[{i}:{i+n-1}]"
def a(i, n=1):
    return f"a{i}" if n == 1 else f"a[{i}:{i+n-1}]"
def s(i, n=1):
    return f"s{i}" if n == 1 else f"s[{i}:{i+n-1}]"

class R:
    def __init__(self, kind, idx):
        self.kind, self.idx = kind, idx
    def __call__(self, off=0, n=1):
        i = self.idx + off
        return f"{self.kind}{i}" if n == 1 else f"{self.kind}[{i}:{i+n-1}]"
    def at(self, off):
        return R(self.kind, self.idx + off)
def V(i): return R('v', i)
def A(i): return R('a', i)

class Asm:
    def __init__(self):
        self.lines = []
        self.vm = []
        self.lg = []
        self.nlabel = 0
    def e(self, txt):
        self.lines.append("    " + txt)
    def c(self, txt):
        self.lines.append("    ; " + txt)
    def label(self, name):
        self.lines.append(name + ":")
    def newlabel(self, base):
        self.nlabel += 1
        return f"L_{base}_{self.nlabel}"
    def raw(self, txt):
        self.lines.append(txt)
    def text(self):
        return "\n".join(self.lines) + "\n"
    def nop(self, n):
        while n > 0:
            k = min(n, 16)
            self.e(f"s_nop {k-1}")
            n -= k
    def vmem(self, txt, tag):
        self.e(txt)
        self.vm.append(tag)
        assert len(self.vm) <= 63
    def lds(self, txt, tag):
        if len(self.lg) >= 15:
            self.e("s_waitcnt lgkmcnt(10)")
            self.lg = self.lg[-10:]
        self.e(txt)
        self.lg.append(tag)
    def vm_count(self, tag):
        tags = tag if isinstance(tag, (list, tuple, set)) else [tag]
        last = -1
        for i, t in enumerate(self.vm):
            if t in tags:
                last = i
        if last < 0:
            return None
        return len(self.vm) - 1 - last
    def lg_count(self, tag):
        tags = tag if isinstance(tag, (list, tuple, set)) else [tag]
        last = -1
        for i, t in enumerate(self.lg):
            if t in tags:
                last = i
        if last < 0:
            return None
        return len(self.lg) - 1 - last
    def wait(self, vm=None, lg=None):
        parts = []
        if vm is not None:
            n = 0 if vm == 0 else self.vm_count(vm)
            if n is not None:
                assert n <= 63, n
                parts.append(f"vmcnt({n})")
                self.vm = self.vm[len(self.vm) - n:] if n else []
        if lg is not None:
            n = 0 if lg == 0 else self.lg_count(lg)
            if n is not None:
                n = min(n, 15)
                parts.append(f"lgkmcnt({n})")
                self.lg = self.lg[len(self.lg) - n:] if n else []
        if parts:
            self.e("s_waitcnt " + " ".join(parts))
            return True
        return False
    def waitstr(self, vm=None, lg=None):
        n0 = len(self.lines)
        if self.wait(vm, lg):
            return self.lines.pop().strip()
        return None

def pk(op, d, *src, bc=(), neg=()):
    ops, lo, hi = [], [], []
    for i, r in enumerate(src):
        if i in bc:
            ops.append(f"v[{r & ~1}:{(r & ~1) + 1}]"); lo.append(r & 1); hi.append(r & 1)
        else:
            assert r % 2 == 0
            ops.append(f"v[{r}:{r+1}]"); lo.append(0); hi.append(1)
    assert d % 2 == 0
    t = f"v_pk_{op}_f32 v[{d}:{d+1}], " + ", ".join(ops)
    if any(lo): t += " op_sel:[" + ",".join(map(str, lo)) + "]"
    if not all(hi): t += " op_sel_hi:[" + ",".join(map(str, hi)) + "]"
    if neg:
        n = ",".join("1" if i in neg else "0" for i in range(len(src)))
        t += f" neg_lo:[{n}] neg_hi:[{n}]"
    return t
```

```python
import sys, math, struct
from asm import *

NAME = "interleave_layers__softmax_full_mha__mixer_s_mlp__prompt"
MB = 1 << 20
LFLAG = 0
XTAB = 4096
HFLAG = 8192
KVFLAG = 16384
EPOCH = 24576
QF0, QF_L = 1 * MB, 2 * MB
KVF0, KVF_L = 5 * MB, 4 * MB
WIMG, WIMG_S = 13 * MB, 90112
import os
DEBUG_LAYOUT = os.environ.get('DBGL', '0') == '1'
U = 229376
LB0 = 16 * MB
if DEBUG_LAYOUT:
    OF, XA, HF, X1, XF = [i * U for i in range(5)]
    STA, ST1, STF = 5 * U, 5 * U + 32768, 5 * U + 65536
    HH = 5 * U + 98304
else:
    OF = HF = 0
    XA = X1 = XF = U + 32768
    STA = ST1 = STF = U
    HH = 2 * U + 32768
LB_L = 0
SETSZ = HH + 4 * U
HF2G = 80 * MB
STAMP = 96 * MB
SLOT = 28672
S0, S1, S2, S3 = 0, SLOT, 2 * SLOT, 3 * SLOT
MISC = 4 * SLOT
S4 = MISC + 20480
LDS_BYTES = 163840
XCH = MISC
CSB = MISC + 16384
TRB = MISC + 16384 + 512
sWS, sW, sX = 4, 8, 12
sPX, sPQKV, sPWO, sPW1, sPW2, sPW3, sPW4 = 16, 18, 20, 24, 26, 28, 30
sPOUT, sPDBG, sPWS = 32, 34, 36
sLAYER, sSET, sR, sWAVE, sBLK, sHEAD, sRB4, sCS, sRB2, sFS = 38, 39, 40, 41, 42, 43, 44, 45, 46, 47
sMODE, sLB, sTT, sKH = 48, 49, 50, 51
sC4 = 52
sT = 60
sDS = 70
sMSK = 72
sSPIN, sNP, sCNT, sKV, sKVB, sIT = 74, 75, 76, 77, 78, 79
sFLG, sHM = 82, 83
sTB, sNT, sTB3, sOUT, sSTO, sXT, sHFL = 84, 85, 86, 87, 88, 89, 90
vLANE, vL16, vTR, vG8, vPOLL = 0, 1, 2, 3, 4
vT = 5
vMEAN, vR1 = 12, 13
vA0, vA1 = 14, 15
vX = 16
vOST, vTCH, vTCO, vDUM, vXW, vXR, vCSA, vPF = 192, 196, 197, 198, 199, 200, 201, 202
XP = 248

EPS = 1e-5
def f2u(x): return struct.unpack('<I', struct.pack('<f', x))[0]
def fx(x): return hex(f2u(x))
LOG2E = 1.4426950408889634
QSCALE = LOG2E / math.sqrt(28.0)
GC0 = -2.0 * math.sqrt(2.0 / math.pi) * LOG2E
GC1 = GC0 * 0.044715
SPIN_MAX = 200000

class Gen(Asm):
    def __init__(self, stamps=False, stop=None, force_slow=False, opt=()):
        super().__init__()
        self.stamps, self.stop, self.force_slow, self.opt = stamps, stop, force_slow, set(opt)
        self.stnames = []

    def c4(self, k):
        return "0" if k == 0 else s(sC4 + k - 1)

    def stamp(self, name):
        if self.stamps:
            if name not in self.stnames: self.stnames.append(name)
            idx = self.stnames.index(name)
            assert idx < 64
            self.e(f"s_mem{'real' if name.startswith('rt') else ''}time s[{sT+8}:{sT+9}]")
            self.e("s_waitcnt lgkmcnt(0)")
            self.e(f"v_writelane_b32 v203, {s(sT+8)}, {idx}")
            self.lg = []

    def dump_stamps(self):
        if not self.stamps: return
        e = self.e
        self.stamp('rt1'); self.stamp('last')
        e(f"s_lshl_b32 {s(sT)}, s2, 2")
        e(f"s_add_u32 {s(sT)}, {s(sT)}, {s(sWAVE)}")
        e(f"s_lshl_b32 {s(sT)}, {s(sT)}, 8")
        e(f"s_lshl_b32 {s(sT+1)}, {s(sLAYER)}, 18")
        e(f"s_add_u32 {s(sT)}, {s(sT)}, {s(sT+1)}")
        e(f"s_add_u32 {s(sT)}, {s(sT)}, {STAMP}")
        e(f"v_lshlrev_b32 {v(vT+1)}, 2, {v(vLANE)}")
        e(f"buffer_store_dword v203, {v(vT+1)}, {s(sWS,4)}, {s(sT)} offen")
        e("s_nop 1")
        e("v_mov_b32 v203, 0")
        self.stamp('start'); self.stamp('rt0')

    def begin(self, name):
        self.raw(f".globl {name}")
        self.raw(".p2align 8")
        self.raw(f".type {name},@function")
        self.label(name)

    def setup(self, done):
        e = self.e
        e("s_cmp_ge_u32 s2, 256")
        e(f"s_cbranch_scc1 {done}")
        e(f"s_load_dwordx2 s[36:37], s[0:1], 80")
        e(f"s_load_dwordx16 s[16:31], s[0:1], 0")
        e(f"s_load_dwordx4 s[32:35], s[0:1], 64")
        if self.stamps: e("v_mov_b32 v203, 0")
        e(f"v_lshrrev_b32 {v(vT)}, 6, v0")
        e(f"v_and_b32 {v(vLANE)}, 63, v0")
        e(f"v_readfirstlane_b32 {s(sWAVE)}, {v(vT)}")
        e(f"v_lshlrev_b32 {v(vL16)}, 4, {v(vLANE)}")
        e(f"s_and_b32 {s(sSET)}, s2, 7")
        e(f"s_lshr_b32 {s(sR)}, s2, 3")
        e(f"s_and_b32 {s(sHEAD)}, {s(sR)}, 15")
        e(f"s_lshr_b32 {s(sT)}, {s(sR)}, 4")
        e(f"s_lshl_b32 {s(sBLK)}, {s(sSET)}, 1")
        e(f"s_add_u32 {s(sBLK)}, {s(sBLK)}, {s(sT)}")
        e(f"s_lshl_b32 {s(sTB3)}, {s(sBLK)}, 2")
        e(f"s_add_u32 {s(sTB3)}, {s(sTB3)}, {s(sWAVE)}")
        e("s_waitcnt lgkmcnt(0)")
        self.srd(sWS, sPWS, 256 * MB)
        self.stamp('start')
        self.stamp('rt0')
    def setup2(self):
        e = self.e
        for k in range(8): e(f"s_movk_i32 {s(sC4+k)}, {hex(4096*(k+1))}" if k < 7 else f"s_mov_b32 {s(sC4+k)}, {4096*(k+1)}")
        e(f"v_lshrrev_b32 {v(vT)}, 5, {v(vLANE)}")
        e(f"v_lshlrev_b32 {v(vCSA)}, 4, {v(vT)}")
        e(f"v_add_u32 {v(vCSA)}, {CSB}, {v(vCSA)}")
        e(f"v_lshlrev_b32 {v(vTR)}, 8, {v(vT)}")
        e(f"v_bfe_u32 {v(vT)}, {v(vLANE)}, 2, 2")
        e(f"v_lshl_add_u32 {v(vTR)}, {v(vT)}, 6, {v(vTR)}")
        e(f"v_bfe_u32 {v(vT)}, {v(vLANE)}, 4, 1")
        e(f"v_lshl_add_u32 {v(vTR)}, {v(vT)}, 5, {v(vTR)}")
        e(f"v_and_b32 {v(vT)}, 3, {v(vLANE)}")
        e(f"v_lshl_add_u32 {v(vTR)}, {v(vT)}, 3, {v(vTR)}")

    def srd(self, d, p, nbytes):
        for x in self.srd_items(d, p, nbytes): self.e(x)
    def srd_items(self, d, p, nbytes):
        return [f"s_mov_b32 {s(d)}, {s(p)}", f"s_and_b32 {s(d+1)}, {s(p+1)}, 0xffff",
                f"s_mov_b32 {s(d+2)}, {nbytes}", f"s_mov_b32 {s(d+3)}, 0x20000"]
    def lane_g8(self, dst, pitch):
        e = self.e
        e(f"v_bfe_u32 {v(vT)}, {v(vLANE)}, 2, 3")
        e(f"v_mul_u32_u24 {v(dst)}, {pitch}, {v(vT)}")
        e(f"v_lshrrev_b32 {v(vT)}, 5, {v(vLANE)}")
        e(f"v_lshl_add_u32 {v(dst)}, {v(vT)}, 6, {v(dst)}")
        e(f"v_and_b32 {v(vT)}, 3, {v(vLANE)}")
        e(f"v_lshl_add_u32 {v(dst)}, {v(vT)}, 4, {v(dst)}")
    def lane_t32(self, dst, pitch):
        e = self.e
        e(f"v_lshrrev_b32 {v(vT)}, 2, {v(vLANE)}")
        e(f"v_mul_u32_u24 {v(dst)}, {pitch}, {v(vT)}")
        e(f"v_and_b32 {v(vT)}, 3, {v(vLANE)}")
        e(f"v_lshl_add_u32 {v(dst)}, {v(vT)}, 4, {v(dst)}")

    def dma_items(self, n, gstep, lsteps, voff, tag):
        items = []
        for i in range(n):
            it = []
            if i:
                ls = lsteps[i] if isinstance(lsteps, list) else lsteps
                it += [(f"s_add_u32 m0, m0, {ls & 0xffffffff}", None), (f"s_add_u32 {s(sDS)}, {s(sDS)}, {gstep}", None)]
            it.append((f"buffer_load_dwordx4 {v(voff)}, {s(sW,4)}, {s(sDS)} offen lds", tag))
            items.append(it)
        return items
    def dma_g8(self, p, nbytes, pitch, scol, colmul, coladd, lo, hi, voff, tag):
        init = self.srd_items(sW, p, nbytes) + [
            f"s_lshl_b32 {s(sDS)}, {s(sWAVE)}, 10", f"s_add_u32 m0, {s(sDS)}, {lo}",
            f"s_mul_i32 {s(sDS)}, {s(sWAVE)}, {8*pitch}", f"s_mul_i32 {s(sT+7)}, {s(scol)}, {colmul}",
            f"s_add_u32 {s(sDS)}, {s(sDS)}, {s(sT+7)}"]
        if coladd: init.append(f"s_add_u32 {s(sDS)}, {s(sDS)}, {coladd}")
        ls = [4096] * 14; ls[7] = hi - lo - 6 * 4096
        return init, self.dma_items(14, 32 * pitch, ls, voff, tag)
    def dma_t32(self, p, nbytes, pitch, scol, colmul, coladd, lds, voff, tag):
        init = self.srd_items(sW, p, nbytes) + [
            f"s_lshl_b32 {s(sDS)}, {s(sWAVE)}, 10", f"s_add_u32 m0, {s(sDS)}, {lds}",
            f"s_mul_i32 {s(sDS)}, {s(sWAVE)}, {16*pitch}", f"s_mul_i32 {s(sT+7)}, {s(scol)}, {colmul}",
            f"s_add_u32 {s(sDS)}, {s(sDS)}, {s(sT+7)}", f"s_add_u32 {s(sDS)}, {s(sDS)}, {coladd}"]
        return init, self.dma_items(7, 64 * pitch, 4096, voff, tag)
    def dma_w4chunk(self, c, lds, tag):
        init = [f"s_add_u32 m0, {s(sOL4)}, {lds}", f"s_add_u32 {s(sDS)}, {s(sOW4)}, {112*c*896}"]
        return init, self.dma_items(7, 16 * 896, 2048, vG8, tag)
    def w4_bases(self):
        e = self.e
        self.srd(sW, sPW4, 1792 * 896)
        e(f"s_mul_i32 {s(sOL4)}, {s(sKH)}, 14336"); e(f"s_lshl_b32 {s(sT+7)}, {s(sTT)}, 10")
        e(f"s_add_u32 {s(sOL4)}, {s(sOL4)}, {s(sT+7)}")
        e(f"s_mul_i32 {s(sOW4)}, {s(sKH)}, {896*896}"); e(f"s_mul_i32 {s(sT+7)}, {s(sTT)}, {8*896}")
        e(f"s_add_u32 {s(sOW4)}, {s(sOW4)}, {s(sT+7)}"); e(f"s_lshl_b32 {s(sT+7)}, {s(sCS)}, 7")
        e(f"s_add_u32 {s(sOW4)}, {s(sOW4)}, {s(sT+7)}")
    def dma_wimg(self, t, lds):
        items = []
        for i in range(7):
            it = []
            if i == 0: it += [(f"s_add_u32 m0, {s(sOIL)}, {lds}", None), (f"s_add_u32 {s(sDS)}, {s(sOIM)}, {t*SLOT}", None)]
            if i == 4: it += [(f"s_add_u32 m0, m0, 4096", None), (f"s_add_u32 {s(sDS)}, {s(sDS)}, 4096", None)]
            it.append((f"buffer_load_dwordx4 {v(vL16)}, {s(sWS,4)}, {s(sDS)} offen offset:{1024*(i%4)} lds", f"wq{t}"))
            items.append(it)
        return items
    def dma_wimg_cs(self):
        return [[(f"s_mov_b32 m0, {CSB}", None), (f"s_sub_u32 {s(sDS)}, {s(sOIM)}, {s(sOIL)}", None),
                 (f"s_add_u32 {s(sDS)}, {s(sDS)}, {3*SLOT}", None), ("s_mov_b64 exec, 0xffffff", None),
                 (f"buffer_load_dwordx4 {v(vL16)}, {s(sWS,4)}, {s(sDS)} offen lds", "wqc"), ("s_mov_b64 exec, -1", None)]]
    def wimg_bases(self):
        e = self.e
        e(f"s_mul_i32 {s(sOIL)}, {s(sWAVE)}, 7168")
        e(f"s_mul_i32 {s(sOIM)}, {s(sHEAD)}, {WIMG_S}")
        e(f"s_add_u32 {s(sOIM)}, {s(sOIM)}, {s(sOIL)}")
        e(f"s_add_u32 {s(sOIM)}, {s(sOIM)}, {WIMG}")
    def with_init(self, pair):
        init, items = pair
        return [[(x, None) for x in init] + items[0]] + items[1:]
    def emit_item(self, it):
        for x in it: self.emit1(x)
    def emit_items(self, items):
        for it in items: self.emit_item(it)
    def emit1(self, x):
        if isinstance(x, str): self.e(x); return
        txt, tag = x
        if tag is None: self.e(txt)
        elif tag.startswith('lds:'): self.lds(txt, tag[4:])
        else: self.vmem(txt, tag)
    def weave(self, main, items, every):
        for i, x in enumerate(main):
            self.emit1(x)
            if items and (i + 1) % every == 0: self.emit_item(items.pop(0))

    def mfma(self, d, A_, B_, c):
        self.e(f"v_mfma_f32_32x32x16_bf16 {d}, {A_}, {B_}, {c}")
    def tr2(self, b, vaddr, off, second, tag):
        assert 0 <= off + second < 65536, off
        return [(f"ds_read_b64_tr_b16 {b(0,2)}, {v(vaddr)} offset:{off}", "lds:" + tag),
                (f"ds_read_b64_tr_b16 {b(2,2)}, {v(vaddr)} offset:{off+second}", "lds:" + tag)]
    def ones(self, ONE):
        self.e(f"v_mov_b32 {v(vT)}, 0x3f803f80")
        for i in range(4): self.e(f"v_accvgpr_write_b32 {ONE(i)}, {v(vT)}")
    def cs_write(self, ACC, nops=8):
        e = self.e
        e(f"s_lshl_b32 {s(sT)}, {s(sWAVE)}, 7")
        e(f"v_add_u32 {v(vT)}, {s(sT)}, {v(vCSA)}")
        e(f"s_mov_b32 exec_lo, 1")
        e(f"s_mov_b32 exec_hi, 1")
        self.nop(nops)
        for q in range(4):
            self.lds(f"ds_write_b128 {v(vT)}, {ACC(4*q,4)} offset:{32*q}", "csw")
        e("s_mov_b64 exec, -1")
    def colsum_lds(self, vlo, vhi, stepb, second, mid=None):
        AF, ONE, ACC = A(160), A(176), A(180)
        self.ones(ONE)
        nb = 4
        for q in range(28 + 3):
            if q < 28:
                va, qq = (vlo, q) if (q < 14 or vhi is None) else (vhi, q - 14)
                for x in self.tr2(AF.at(4 * (q % nb)), va, qq * stepb, second, f"c{q}"): self.emit1(x)
            r = q - 3
            if r >= 0:
                self.wait(lg=f"c{r}")
                self.mfma(ACC(0, 16), AF(4 * (r % nb), 4), ONE(0, 4), "0" if r == 0 else ACC(0, 16))
            if mid and q == 20: mid()
        self.cs_write(ACC)
        self.wait(lg=0)
    def cs_reads(self, dst, off, va=vCSA):
        return [(f"ds_read_b128 {v(dst+4*q,4)}, {v(va)} offset:{off+32*q}", "lds:cs") for q in range(4)]

    def stats_loads(self, dst, sbase):
        return [(f"buffer_load_dwordx4 {v(dst+4*q,4)}, {v(vL16)}, {s(sWS,4)}, {s(sbase)} offen offset:{1024*q} sc1", "st") for q in range(3)] + \
               [(f"buffer_load_dwordx2 {v(dst+12,2)}, {v(vL16)}, {s(sWS,4)}, {s(sbase)} offen offset:3072 sc1", "st")]
    def stats_base(self, sdst, region, stb):
        e = self.e
        e(f"s_lshl_b32 {s(sdst)}, {s(stb)}, 12")
        e(f"s_add_u32 {s(sdst)}, {s(sdst)}, {s(sLBS)}")
        e(f"s_add_u32 {s(sdst)}, {s(sdst)}, {region}")
    def stats_sum(self, dst):
        o = [f"v_add_f32 {v(dst+i)}, {v(dst+i)}, {v(dst+7+i)}" for i in range(7)]
        o += [f"v_add_f32 {v(dst+i)}, {v(dst+i)}, {v(dst+3+i)}" for i in range(3)]
        o += [f"v_add_f32 {v(dst)}, {v(dst)}, {v(dst+6)}", f"v_add_f32 {v(dst+1)}, {v(dst+1)}, {v(dst+2)}",
              f"v_add_f32 {v(dst)}, {v(dst)}, {v(dst+1)}"]
        return o
    def stats_finish(self, vs, tmp, mean=vMEAN):
        return [f"v_mov_b32 {v(tmp)}, {v(vs)}", "s_nop 1", f"v_permlane32_swap_b32 {v(tmp)}, {v(vs)}",
                f"v_mul_f32 {v(mean)}, {fx(1/448)}, {v(tmp)}", f"v_mul_f32 {v(vs)}, {fx(1/448)}, {v(vs)}",
                f"v_fma_f32 {v(tmp)}, -{v(mean)}, {v(mean)}, {v(vs)}", f"v_max_f32 {v(tmp)}, 0, {v(tmp)}"]
    def stats_partial(self, x, t):
        o = [pk('add', t, x, x + 2), pk('mul', t + 2, x, x), pk('add', t + 4, x + 4, x + 6), pk('mul', t + 6, x + 2, x + 2)]
        for i in range(2, 8):
            o.append(pk('fma', t + 2 + 4 * (i & 1), x + 2 * i, x + 2 * i, t + 2 + 4 * (i & 1)))
            if i >= 4: o.append(pk('add', t + 4 * (i & 1), t + 4 * (i & 1), x + 2 * i))
        o += [pk('add', t, t, t + 4), pk('add', t + 2, t + 2, t + 6),
              f"v_add_f32 {v(t)}, {v(t)}, {v(t+1)}", f"v_add_f32 {v(t+1)}, {v(t+2)}, {v(t+3)}", "s_nop 1",
              f"v_permlane32_swap_b32 {v(t)}, {v(t+1)}", f"v_add_f32 {v(t)}, {v(t)}, {v(t+1)}"]
        return o
    def pack16(self, dst, src):
        return [f"v_cvt_pk_bf16_f32 {v(dst+i)}, {v(src+2*i)}, {v(src+2*i+1)}" for i in range(8)]
    def gelu_consts(self, vr, vGA, vGB, vIR):
        return [f"v_rcp_f32 {v(vIR)}, {v(vr)}", f"v_mul_f32 {v(vGB)}, {v(vr)}, {v(vr)}",
                f"v_mul_f32 {v(vGA)}, {fx(GC0)}, {v(vr)}", f"v_mul_f32 {v(vGB)}, {v(vGB)}, {v(vr)}",
                f"v_mul_f32 {v(vGB)}, {fx(GC1)}, {v(vGB)}"]
    def gelu_scalar(self, acc, cs, tmp, dst, vNM, vGA, vGB, vIR):
        out = []
        for g in range(4):
            r = range(4 * g, 4 * g + 4)
            t = lambda i: v(tmp + (i & 3) + 4 * (g & 1))
            for i in r: out.append(f"v_fmac_f32 {v(acc+i)}, {v(vNM)}, {v(cs+i)}")
            for i in r: out.append(f"v_mul_f32 {t(i)}, {v(acc+i)}, {v(acc+i)}")
            for i in r: out.append(f"v_fma_f32 {t(i)}, {t(i)}, {v(vGB)}, {v(vGA)}")
            for i in r: out.append(f"v_mul_f32 {t(i)}, {t(i)}, {v(acc+i)}")
            for i in r: out.append(f"v_exp_f32 {t(i)}, {t(i)}")
            for i in r: out.append(f"v_fma_f32 {t(i)}, {t(i)}, {v(vIR)}, {v(vIR)}")
            for i in r: out.append(f"v_rcp_f32 {t(i)}, {t(i)}")
            for i in r: out.append(f"v_mul_f32 {t(i)}, {t(i)}, {v(acc+i)}")
            for q in range(2): out.append(f"v_cvt_pk_bf16_f32 {v(dst+2*g+q)}, {t(4*g+2*q)}, {t(4*g+2*q+1)}")
        return out
    def gelu_pk(self, acc, cs, tmp, dst, vNM, vGA, vGB, vIR):
        out = []
        for g in range(4):
            P = (0, 2)
            u = acc + 4 * g; t = tmp + 4 * (g & 1)
            if cs is not None:
                for p in P: out.append(pk('fma', u + p, vNM, cs + 4 * g + p, u + p, bc=(0,)))
            for p in P: out.append(pk('mul', t + p, u + p, u + p))
            for p in P: out.append(pk('fma', t + p, t + p, vGB, vGA, bc=(1, 2)))
            for p in P: out.append(pk('mul', t + p, t + p, u + p))
            for i in range(4): out.append(f"v_exp_f32 {v(t+i)}, {v(t+i)}")
            for p in P: out.append(pk('fma', t + p, t + p, vIR, vIR, bc=(1, 2)))
            for i in range(4): out.append(f"v_rcp_f32 {v(t+i)}, {v(t+i)}")
            for p in P: out.append(pk('mul', t + p, t + p, u + p))
            for p in P: out.append(f"v_cvt_pk_bf16_f32 {v(dst+2*g+p//2)}, {v(t+p)}, {v(t+p+1)}")
        return out

    def moded(self, fn):
        l1, l2 = self.newlabel("slow"), self.newlabel("join")
        self.e(f"s_cmp_lg_u32 {s(sMODE)}, 0")
        self.e(f"s_cbranch_scc1 {l1}")
        vm0 = list(self.vm)
        fn("")
        vm1 = list(self.vm)
        self.label(l2)
        self.tails.append((l1, l2, fn, vm0, vm1))
    def flush_tails(self):
        vm, lg = self.vm, self.lg
        for l1, l2, fn, vm0, vm1 in self.tails:
            self.label(l1)
            self.vm = list(vm0)
            fn(" sc1")
            assert self.vm == vm1
            self.e(f"s_branch {l2}")
        self.tails = []
        self.vm, self.lg = vm, lg

    def poll_issue(self, va=vPOLL):
        self.vmem(f"buffer_load_dword {v(vPF)}, {v(va)}, {s(sWS,4)}, 0 offen sc1", "pf")
    def poll(self, phase, issued=False, va=vPOLL):
        e = self.e
        done, lp = self.newlabel("poll_done"), self.newlabel("poll")
        if not issued: self.poll_issue(va)
        e(f"s_mov_b32 {s(sSPIN)}, 0")
        e(f"s_add_u32 {s(sPV)}, {s(sPH)}, {phase}")
        self.label(lp)
        self.wait(vm=0)
        e(f"v_subrev_u32 {v(vPF)}, {s(sPV)}, {v(vPF)}")
        e(f"v_cmp_ge_u32 vcc, 31, {v(vPF)}")
        e(f"s_and_b64 {s(sT,2)}, vcc, {s(sMSK,2)}")
        e(f"s_cmp_eq_u64 {s(sT,2)}, {s(sMSK,2)}")
        e(f"s_cbranch_scc1 {done}")
        e(f"buffer_load_dword {v(vPF)}, {v(va)}, {s(sWS,4)}, 0 offen sc1")
        e(f"s_add_u32 {s(sSPIN)}, {s(sSPIN)}, 1")
        e(f"s_cmp_lt_u32 {s(sSPIN)}, {SPIN_MAX}")
        e(f"s_cbranch_scc1 {lp}")
        e("s_waitcnt vmcnt(0)")
        self.label(done)

    def signal(self, phase, halo=False, tags=0):
        e = self.e
        self.stamp(f'sig{phase}_st')
        e(f"s_add_u32 {s(sPV)}, {s(sPH)}, {phase}")
        e(f"v_mov_b32 {v(vT)}, {s(sPV)}")
        e(f"s_cmp_lg_u32 {s(sWAVE)}, 0")
        self.wait(vm=tags, lg=0)
        e("s_barrier")
        skip = self.newlabel("sig_done")
        e(f"s_cbranch_scc1 {skip}")
        e("s_mov_b64 exec, 1")
        if halo:
            nh = self.newlabel("nohf")
            e(f"s_cmp_eq_u32 s100, 0")
            e(f"s_cbranch_scc1 {nh}")
            e(f"buffer_store_dword {v(vT)}, off, {s(sWS,4)}, {s(sHFL)} sc1")
            self.label(nh)
        self.moded(lambda f: e(f"buffer_store_dword {v(vT)}, off, {s(sWS,4)}, {s(sFLG)}{f}"))
        e("s_mov_b64 exec, -1")
        self.label(skip)
        self.stamp(f'sig{phase}_done')

    def setmask(self, bits, smul, mul):
        e = self.e
        e(f"s_mul_i32 {s(sT)}, {s(smul)}, {mul}")
        e(f"s_lshl_b32 {s(sMSK)}, {hex(bits)}, {s(sT)}")
        e(f"s_mov_b32 {s(sMSK+1)}, 0")
    def burst(self, loads, groups):
        i = 0
        for gi, g in enumerate(groups):
            if gi: self.e("s_barrier")
            for x in loads[i:i + g]: self.emit1(x)
            i += g
        return loads[i:]

sOW4, sOL4, sOIM, sOIL = 91, 92, 93, 94
sLBS, sLBH, sHD, sTCH = 80, 81, 101, 71
sPH, sPV, sKFL = 3, 22, 23

def descriptor(name):
    return f""".amdhsa_kernel {name}
  .amdhsa_next_free_vgpr 512
  .amdhsa_next_free_sgpr 102
  .amdhsa_accum_offset 256
  .amdhsa_group_segment_fixed_size 0
  .amdhsa_kernarg_size 88
  .amdhsa_user_sgpr_count 2
  .amdhsa_user_sgpr_kernarg_segment_ptr 1
  .amdhsa_system_sgpr_workgroup_id_x 1
  .amdhsa_float_denorm_mode_32 3
.end_amdhsa_kernel
"""
```

```python
import sys, re
from g import *

class Gen2(Gen):
    tails = []
    ACC3 = [176, 208, 224]
    vS, vR, vNM, vRQ, vCV = 32, 46, 47, 48, 50
    CSQ, CSK, TR, TN = 64, 80, 96, 112
    PQ, PK, PV = 128, 136, 144
    def qkv_common_addr(self):
        e = self.e
        e(f"s_lshl_b32 {s(sT)}, {s(sWAVE)}, 8")
        e(f"s_add_u32 {s(sT)}, {s(sT)}, {TRB}")
        e(f"v_lshl_add_u32 {v(vT+4)}, {v(vLANE)}, 2, {s(sT)}")
        e(f"s_sub_u32 {s(sT)}, {s(sT)}, {CSB}")
        e(f"v_add_u32 {v(vT+5)}, {s(sT)}, {v(vCSA)}")
        e(f"v_and_b32 {v(vT+3)}, 31, {v(vLANE)}")
        e(f"v_lshlrev_b32 {v(vT+3)}, 2, {v(vT+3)}")
        e(f"v_add_u32 {v(vT+3)}, {CSB+256}, {v(vT+3)}")
    def qkv_lists(self):
        vS, vR, vNM, vRQ, vCV = self.vS, self.vR, self.vNM, self.vRQ, self.vCV
        fin = self.stats_finish(vS, vS + 1) + [
            f"v_add_f32 {v(vS+1)}, {fx(EPS)}, {v(vS+1)}", f"v_rsq_f32 {v(vR)}, {v(vS+1)}",
            f"v_sub_f32 {v(vNM)}, 0, {v(vMEAN)}", f"v_cmp_gt_u32 vcc, 32, {v(vLANE)}",
            f"v_mul_f32 {v(vRQ)}, {fx(QSCALE)}, {v(vR)}", f"v_mul_f32 {v(vRQ+1)}, {v(vNM)}, {v(vR)}",
            f"v_cndmask_b32 {v(vRQ+1)}, {v(vRQ+1)}, {v(vR)}, vcc",
            (f"ds_write_b32 {v(vT+4)}, {v(vRQ+1)}", "lds:trw")]
        trreads = [(f"ds_read_b128 {v(self.TR+4*q,4)}, {v(vT+5)} offset:{32*q}", "lds:cs") for q in range(4)] + \
                  [(f"ds_read_b128 {v(self.TN+4*q,4)}, {v(vT+5)} offset:{128+32*q}", "lds:cs") for q in range(4)]
        csreads = self.cs_reads(self.CSQ, 0) + self.cs_reads(self.CSK, 128) + [(f"ds_read_b32 {v(vCV)}, {v(vT+3)}", "lds:cs")]
        return fin, trreads, csreads

    def qkv0_issue(self):
        e = self.e
        self.srd(sX, sPX, 2048 * 896)
        self.srd(sW, sPQKV, 448 * 2688)
        lab = self.newlabel("ep0")
        e(f"s_lshl_b32 {s(sT+1)}, s2, 2")
        e(f"s_add_u32 {s(sT+1)}, {s(sT+1)}, {s(sWAVE)}")
        e(f"s_mov_b32 {s(sT+2)}, {EPOCH}")
        e(f"s_cmp_lg_u32 {s(sT+1)}, 3")
        e(f"s_cbranch_scc1 {lab}")
        e(f"buffer_load_dword {v(vPF)}, off, {s(sWS,4)}, {s(sT+2)} sc1")
        self.label(lab)
        e(f"v_lshlrev_b32 {v(vT)}, 7, {v(vLANE)}")
        e(f"s_lshl_b32 {s(sT+1)}, {s(sR)}, 2")
        e(f"s_add_u32 {s(sT+1)}, {s(sT+1)}, {s(sWAVE)}")
        e(f"s_mul_i32 {s(sT+2)}, {s(sT+1)}, {74*128}")
        e(f"s_mul_i32 {s(sT+3)}, {s(sT+1)}, {14*128}")
        e(f"s_mul_i32 {s(sT+4)}, {s(sSET)}, {U}")
        e(f"s_add_u32 {s(sT+3)}, {s(sT+3)}, {s(sT+4)}")
        if 'q0notouch' in self.opt: e(f"v_bfrev_b32 {v(vT)}, 1")
        e("s_mov_b64 exec, 0x3fff")
        self.vmem(f"buffer_load_dword {v(vDUM)}, {v(vT)}, {s(sX,4)}, {s(sT+3)} offen", "tch")
        e("s_mov_b64 exec, -1")
        self.vmem(f"buffer_load_dword {v(vDUM)}, {v(vT)}, {s(sW,4)}, {s(sT+2)} offen", "tch")
        e(f"s_add_u32 {s(sT+2)}, {s(sT+2)}, 8192")
        e("s_mov_b64 exec, 0x3ff")
        self.vmem(f"buffer_load_dword {v(vDUM)}, {v(vT)}, {s(sW,4)}, {s(sT+2)} offen", "tch")
        e("s_mov_b64 exec, -1")
        XD, XR_ = 96, 100
        e(f"v_lshrrev_b32 {v(vT)}, 3, {v(vLANE)}")
        e(f"v_mul_u32_u24 {v(vT+1)}, 896, {v(vT)}")
        e(f"v_lshrrev_b32 {v(vT)}, 4, {v(vLANE)}")
        e(f"v_xor_b32 {v(vT)}, {v(vT)}, {v(vLANE)}")
        e(f"v_and_b32 {v(vT)}, 7, {v(vT)}")
        e(f"v_lshl_add_u32 {v(XD)}, {v(vT)}, 4, {v(vT+1)}")
        e(f"v_xor_b32 {v(vT)}, 4, {v(vT)}")
        e(f"v_lshl_add_u32 {v(XD+1)}, {v(vT)}, 4, {v(vT+1)}")
        e(f"v_add_u32 {v(XD+2)}, {2*6144}, {v(XD)}")
        e(f"v_add_u32 {v(XD+3)}, {3*6144}, {v(XD+1)}")
        e(f"v_add_u32 {v(XD+1)}, {6144}, {v(XD+1)}")
        self.lane_t32(vT + 2, 2688)
        e(f"s_mul_i32 {s(sOW4)}, {s(sWAVE)}, {16*2688}")
        e(f"s_mul_i32 {s(sT+1)}, {s(sHEAD)}, 56")
        e(f"s_add_u32 {s(sOW4)}, {s(sOW4)}, {s(sT+1)}")
        e(f"s_lshl_b32 {s(sOL4)}, {s(sWAVE)}, 10")
        e(f"s_mul_i32 {s(sOIM)}, {s(sTB3)}, {32*896}")
        e(f"s_lshl_b32 {s(sOIL)}, {s(sWAVE)}, 14")
        e(f"s_add_u32 {s(sOIL)}, {s(sOIL)}, {S3}")
        self.stamp('q0_tch')
        if 'q0notouch' in self.opt: self.emit_items(self.qkv0_group(0))
    def epoch_publish(self):
        e = self.e
        lab = self.newlabel("ep1")
        e(f"s_lshl_b32 {s(sT+1)}, s2, 2")
        e(f"s_add_u32 {s(sT+1)}, {s(sT+1)}, {s(sWAVE)}")
        e(f"s_cmp_lg_u32 {s(sT+1)}, 3")
        e(f"s_cbranch_scc1 {lab}")
        e(f"s_waitcnt vmcnt({len(self.vm)})")
        e(f"v_readfirstlane_b32 {s(sT+1)}, {v(vPF)}")
        e(f"s_mov_b32 {s(sT+2)}, {EPOCH}")
        self.nop(2)
        e(f"s_add_u32 {s(sT+1)}, {s(sT+1)}, 64")
        e(f"s_sub_u32 {s(sT+3)}, {s(sT+1)}, 1")
        e(f"s_cmp_ge_u32 {s(sT+3)}, 0xffffff00")
        e(f"s_cselect_b32 {s(sT+1)}, 64, {s(sT+1)}")
        e(f"v_mov_b32 {v(vT)}, {s(sT+1)}")
        e(f"v_mov_b32 {v(vT+1)}, 0")
        e("s_mov_b64 exec, 1")
        e(f"global_store_dword {v(vT+1)}, {v(vT)}, {s(sPDBG,2)} sc1")
        e(f"buffer_store_dword {v(vT)}, off, {s(sWS,4)}, {s(sT+2)} sc1")
        e("s_mov_b64 exec, -1")
        self.label(lab)
    def qkv0_group(self, g):
        XD = 96
        items = []
        for i in range(4):
            it = []
            if i == 0: it += [(f"s_add_u32 m0, {s(sOIL)}, {(g%4)*4096}", None), (f"s_add_u32 {s(sDS)}, {s(sOIM)}, {128*g}", None)]
            it.append((f"buffer_load_dwordx4 {v(XD+i)}, {s(sX,4)}, {s(sDS)} offen offset:{1024*i} lds", f"g{g}"))
            items.append(it)
        for t in range(3):
            items.append([(f"s_add_u32 m0, {s(sOL4)}, {t*SLOT + g*4096}", None),
                          (f"s_add_u32 {s(sDS)}, {s(sOW4)}, {g*64*2688 + t*896}", None),
                          (f"buffer_load_dwordx4 {v(vT+2)}, {s(sW,4)}, {s(sDS)} offen lds", f"g{g}")])
        return items

    def qkv0(self):
        e = self.e
        ACC, vS = self.ACC3, self.vS
        AF, ONE, CSA = A(128), A(176), A(180)
        XR_, BB = 100, 64
        vAD = [vA0, vA1, vT + 6, 52]
        vW = 53
        e(f"v_and_b32 {v(vT)}, 31, {v(vLANE)}")
        e(f"v_lshrrev_b32 {v(vT+1)}, 1, {v(vT)}")
        e(f"v_lshrrev_b32 {v(vT+3)}, 5, {v(vLANE)}")
        e(f"v_xor_b32 {v(vT+1)}, {v(vT+1)}, {v(vT+3)}")
        e(f"v_and_b32 {v(vT+1)}, 7, {v(vT+1)}")
        e(f"v_lshl_add_u32 {v(vT)}, {v(vT)}, 7, {s(sOIL)}")
        for u in range(4):
            e(f"v_xor_b32 {v(vT+4)}, {2*u}, {v(vT+1)}")
            e(f"v_lshl_add_u32 {v(XR_+u)}, {v(vT+4)}, 4, {v(vT)}")
        e(f"v_lshl_add_u32 {v(vAD[0])}, {v(vT+3)}, 8, {v(vTR)}")
        e(f"v_add_u32 {v(vAD[1])}, {S1}, {v(vAD[0])}")
        e(f"v_add_u32 {v(vAD[2])}, {S2}, {v(vAD[0])}")
        e(f"s_mul_i32 {s(sT)}, {s(sWAVE)}, {SLOT}")
        e(f"s_cmp_eq_u32 {s(sWAVE)}, 3")
        e(f"s_cselect_b32 {s(sT)}, 0, {s(sT)}")
        e(f"v_add_u32 {v(vAD[3])}, {s(sT)}, {v(vAD[0])}")
        self.ones(ONE)
        e(f"v_mov_b32 {v(vS+4)}, 0x3f803f80")
        for i in range(4): e(f"v_mov_b32 {v(vS+i)}, 0")
        def aread(q):
            out = []
            for t in range(4): out += self.tr2(AF.at(16 * (q % 3) + 4 * t), vAD[t], q * 1024, 256, f"a{q}")
            return out
        def breads(c):
            return [(f"ds_read_b128 {v(BB+16*(c&1)+4*u,4)}, {v(XR_+u)} offset:{(c%4)*4096}", f"lds:x{c}") for u in range(4)]
        self.wait(vm="g0")
        e("s_barrier")
        self.stamp('q0_g0')
        for x in breads(0) + aread(0): self.emit1(x)
        for c in range(7):
            if c in (2, 4, 6): self.stamp(f'q0_g{c}')
            Bc = BB + 16 * (c & 1)
            items = self.qkv0_group(c + 2) if c + 2 < 7 else []
            if c == 4:
                items.append([(f"v_mov_b32 {v(vT)}, 0", None), (f"global_load_dword {v(vPF)}, {v(vT)}, {s(sPDBG,2)} sc1", "non")])
            self.wait(lg=f"x{c}")
            if c == 0:
                for x in aread(1): self.emit1(x)
            for r in range(16):
                e(f"v_dot2c_f32_bf16 {v(vS+(r&1))}, {v(Bc+r)}, {v(vS+4)}")
                e(f"v_dot2c_f32_bf16 {v(vS+2+(r&1))}, {v(Bc+r)}, {v(Bc+r)}")
            for u in range(4):
                q = 4 * c + u
                if u == 2 and c < 6:
                    self.wait(vm=f"g{c+1}")
                    e("s_barrier")
                self.wait(lg=f"a{q}")
                nxt = aread(q + 2) if q + 2 < 28 else []
                bn = breads(c + 1) if (u == 2 and c < 6) else []
                for t in range(4):
                    af = AF(16 * (q % 3) + 4 * t, 4)
                    if t < 2: self.mfma(v(ACC[t], 16), af, v(Bc + 4 * u, 4), "0" if q == 0 else v(ACC[t], 16))
                    elif t == 2: self.mfma(v(ACC[t], 16), v(Bc + 4 * u, 4), af, "0" if q == 0 else v(ACC[t], 16))
                    else: self.mfma(CSA(0, 16), af, ONE(0, 4), "0" if q == 0 else CSA(0, 16))
                    for x in nxt[2 * t:2 * t + 2]: self.emit1(x)
                    if bn: self.emit1(bn.pop(0))
                    if t in (1, 3) and items: self.emit_item(items.pop(0))
                if c == 5 and u == 3: self.qkv_common_addr()
            assert not items
        self.stamp('qkv_kloop')
        fin, trreads, csreads = self.qkv_lists()
        e(f"v_add_f32 {v(vS)}, {v(vS)}, {v(vS+1)}")
        e(f"v_add_f32 {v(vS+1)}, {v(vS+2)}, {v(vS+3)}")
        self.nop(2)
        e(f"v_permlane32_swap_b32 {v(vS)}, {v(vS+1)}")
        e(f"v_add_f32 {v(vS)}, {v(vS)}, {v(vS+1)}")
        for x in fin: self.emit1(x)
        self.cs_write(CSA, 0)
        for x in trreads: self.emit1(x)
        self.wait(lg="csw")
        e("s_barrier")
        for x in csreads[4:] + csreads[:4]: self.emit1(x)
        self.wait(vm="non")
        e(f"v_readfirstlane_b32 {s(sPH)}, {v(vPF)}")
        self.nop(2)
        e(f"s_cmp_eq_u32 {s(sPH)}, 0")
        e(f"s_cbranch_scc1 L_epoch_wait")
        self.label("L_epoch_ok")
        def epwait():
            self.label("L_epoch_wait")
            e(f"s_mov_b32 {s(sSPIN)}, 0")
            e(f"v_mov_b32 {v(vT)}, 0")
            l2 = self.newlabel("epw")
            self.label(l2)
            e(f"global_load_dword {v(vPF)}, {v(vT)}, {s(sPDBG,2)} sc1")
            e(f"s_add_u32 {s(sSPIN)}, {s(sSPIN)}, 1")
            e(f"s_cmp_ge_u32 {s(sSPIN)}, {SPIN_MAX}")
            e("s_waitcnt vmcnt(0)")
            e(f"s_cbranch_scc1 L_epoch_ok")
            e(f"v_readfirstlane_b32 {s(sPH)}, {v(vPF)}")
            self.nop(2)
            e(f"s_cmp_eq_u32 {s(sPH)}, 0")
            e(f"s_cbranch_scc1 {l2}")
            e("s_branch L_epoch_ok")
        self.outofline.append(epwait)
        self.wait(lg=0)
        self.vm = []; self.lg = []

    def image_out(self):
        e = self.e
        IM = 52
        e(f"s_mul_i32 {s(sT+2)}, {s(sBLK)}, 5376")
        e(f"s_lshl_b32 {s(sT+1)}, {s(sWAVE)}, 10")
        e(f"s_add_u32 {s(sT+2)}, {s(sT+2)}, {s(sT+1)}")
        e(f"v_add_u32 {v(vT+1)}, {s(sT+2)}, {v(vL16)}")
        e(f"v_add_u32 {v(vT+2)}, {CSB}, {v(vL16)}")
        self.lds(f"ds_read_b128 {v(IM,4)}, {v(vT+1)}", "im")
        self.lds(f"ds_read_b128 {v(IM+4,4)}, {v(vT+1)} offset:4096", "im")
        self.lds(f"ds_read_b128 {v(IM+8,4)}, {v(vT+2)}", "im")
        e(f"s_mul_i32 {s(sT+1)}, {s(sHEAD)}, {WIMG_S}")
        e(f"s_add_u32 {s(sT+1)}, {s(sT+1)}, {WIMG}")
        e(f"s_add_u32 {s(sT+2)}, {s(sT+1)}, 4096")
        e(f"s_lshl_b32 {s(sT+4)}, {s(sWAVE)}, 6")
        e(f"v_add_u32 {v(vT)}, {s(sT+4)}, {v(vLANE)}")
        e(f"v_cmp_gt_u32 vcc, 80, {v(vT)}")
        e(f"v_bfrev_b32 {v(vT+3)}, 1")
        e(f"s_add_u32 {s(sT+3)}, {s(sT+1)}, {3*SLOT}")
        e(f"v_cndmask_b32 {v(vT+3)}, {v(vT+3)}, {v(vT+1)}, vcc")
        self.wait(lg=0)
        self.vmem(f"buffer_store_dwordx4 {v(IM,4)}, {v(vT+1)}, {s(sWS,4)}, {s(sT+1)} offen sc1", "o")
        self.vmem(f"buffer_store_dwordx4 {v(IM+4,4)}, {v(vT+3)}, {s(sWS,4)}, {s(sT+2)} offen sc1", "o")
        e("s_mov_b64 exec, 0xffffff")
        self.vmem(f"buffer_store_dwordx4 {v(IM+8,4)}, {v(vL16)}, {s(sWS,4)}, {s(sT+3)} offen sc1", "o")
        e("s_mov_b64 exec, -1")

    def qkv1(self):
        e = self.e
        B, AF, ACC, vS = A(0), A(128), self.ACC3, self.vS
        slots = [S4, S0, S1]
        vAD = [vA0, vA1, vT + 6]
        for t in range(3): e(f"v_add_u32 {v(vAD[t])}, {slots[t]}, {v(vTR)}")
        self.qkv_common_addr()
        fin, trreads, csreads = self.qkv_lists()
        def aread(q):
            out = []
            for t in range(3): out += self.tr2(AF.at(12 * (q % 3) + 4 * t), vAD[t], q * 1024, 512, f"a{q}")
            return out
        self.stats_base(sT + 2, STF, sTB3)
        e(f"s_mul_i32 {s(sT)}, {s(sTB3)}, {SLOT}")
        e(f"s_add_u32 {s(sT)}, {s(sT)}, {s(sLB)}")
        e(f"s_add_u32 {s(sT)}, {s(sT)}, {XF}")
        e(f"v_add_u32 {v(vT+2)}, {s(sT)}, {v(vL16)}")
        e(f"s_lshr_b32 {s(sT+1)}, {s(sR)}, 4")
        self.setmask(0x3fff, sT + 1, 14)
        self.poll(6)
        self.stamp('qkv_poll')
        bl = [(f"buffer_load_dwordx4 {B(4*q,4)}, {v(vT+2)}, {s(sWS,4)}, {self.c4(q//4)} offen offset:{1024*(q%4)} sc1", f"b{q}") for q in range(28)]
        st = self.stats_loads(vS, sT + 2)
        rest = self.burst(bl[:2] + st + bl[2:], [2, 4])
        for q in range(2):
            for x in aread(q): self.emit1(x)
        e("s_barrier")
        for _ in range(4): self.emit1(rest.pop(0))
        sf = self.stats_sum(vS) + fin
        fill = {4 + i: sf[5 * i:5 * i + 5] for i in range((len(sf) + 4) // 5)}
        fill[12] = trreads[:4]; fill[14] = trreads[4:]
        fill[16] = csreads[:4]; fill[18] = csreads[4:]
        for q in range(28):
            self.wait(vm=[f"b{q}", "st"] if q == 4 else f"b{q}", lg=f"a{q}")
            nxt = aread(q + 2) if q + 2 < 28 else []
            fl = list(fill.get(q, []))
            for t in range(3):
                af = AF(12 * (q % 3) + 4 * t, 4)
                cc = "0" if q == 0 else v(ACC[t], 16)
                if t < 2: self.mfma(v(ACC[t], 16), af, B(4 * q, 4), cc)
                else: self.mfma(v(ACC[t], 16), B(4 * q, 4), af, cc)
                for x in nxt[2 * t:2 * t + 2]: self.emit1(x)
                if t == 0 and rest: self.emit1(rest.pop(0))
                if t == 1 and rest and q < 6: self.emit1(rest.pop(0))
                for x in fl[2 * t:2 * t + 2]: self.emit1(x)
        self.stamp('qkv_kloop')
        self.dump_stamps()
        e(f"s_mov_b32 {s(sLAYER)}, 1")
        e(f"s_add_u32 {s(sPH)}, {s(sPH)}, 8")
        e(f"v_bfrev_b32 {v(vTCH)}, 1")
        self.nop(6)
        self.wait(lg=0)
        self.vm = []

    def kv_out(self):
        e = self.e
        ACC, vR, vNM, vRQ, vCV = self.ACC3, self.vR, self.vNM, self.vRQ, self.vCV
        PQ, PK, PV = self.PQ, self.PK, self.PV
        e(f"s_lshl_b32 {s(sKVB)}, {s(sHEAD)}, 18")
        e(f"s_mul_i32 {s(sT+1)}, {s(sLAYER)}, {KVF_L}")
        e(f"s_add_u32 {s(sKVB)}, {s(sKVB)}, {s(sT+1)}")
        e(f"s_add_u32 {s(sKVB)}, {s(sKVB)}, {KVF0}")
        e(f"s_lshl_b32 {s(sSTO)}, {s(sTB3)}, 12")
        e(f"s_add_u32 {s(sSTO)}, {s(sSTO)}, {s(sKVB)}")
        e(f"v_mov_b32 {v(vT)}, 0")
        e(f"s_mov_b32 exec_lo, 0x10000000")
        e(f"s_mov_b32 exec_hi, 0x10000000")
        e(f"v_mov_b32 {v(vT)}, 0x3f803f80")
        e(f"s_mov_b64 exec, -1")
        e(f"s_mov_b32 vcc_lo, 0xf0000000")
        e(f"s_mov_b32 vcc_hi, 0xf0000000")
        def qk_(t, cs_, sc, P):
            ac = ACC[t]
            for i in range(0, 16, 2): e(pk('fma', ac + i, vNM, cs_ + i, ac + i, bc=(0,)))
            for i in range(0, 16, 2): e(pk('mul', ac + i, ac + i, sc, bc=(1,)))
            for x in self.pack16(P, ac): e(x)
            e("s_mov_b32 exec_lo, 0")
            e(f"v_mov_b32 {v(P+6)}, {'0' if t == 0 else '0x3f80'}")
            e(f"v_mov_b32 {v(P+7)}, 0")
            e("s_mov_b32 exec_lo, -1")
        qk_(1, self.CSK, vR, PK)
        for q in range(2):
            self.vmem(f"buffer_store_dwordx4 {v(PK+4*q,4)}, {v(vL16)}, {s(sWS,4)}, {s(sSTO)} offen offset:{1024*q} sc1", "o")
        ac = ACC[2]
        for i in range(0, 16, 2): e(pk('mul', ac + i, ac + i, self.TR + i))
        for i in range(0, 16, 2): e(pk('fma', ac + i, self.TN + i, vCV, ac + i, bc=(1,)))
        for x in self.pack16(PV, ac): e(x)
        for i in range(8): e(f"v_cndmask_b32 {v(PV+i)}, {v(PV+i)}, {v(vT)}, vcc")
        for q in range(2):
            self.vmem(f"buffer_store_dwordx4 {v(PV+4*q,4)}, {v(vL16)}, {s(sWS,4)}, {s(sSTO)} offen offset:{2048+1024*q} sc1", "o")
        self.stamp('kv_st')
        lab = self.newlabel("noimg")
        e(f"s_cmp_lg_u32 {s(sLAYER)}, 0")
        e(f"s_cbranch_scc1 {lab}")
        self.image_out()
        self.label(lab)
        if 'kvtouch' in self.opt:
            e(f"v_lshlrev_b32 {v(vT+1)}, 7, {v(vLANE)}")
            e(f"s_lshl_b32 {s(sT)}, {s(sLAYER)}, 31")
            e(f"v_or_b32 {v(vT+1)}, {s(sT)}, {v(vT+1)}")
            self.vmem(f"buffer_load_dword {v(vDUM)}, {v(vT+1)}, {s(sWS,4)}, {s(sTCH)} offen", "tch")
            e(f"s_add_u32 {s(sT)}, {s(sTCH)}, 8192")
            e(f"s_mov_b64 exec, {hex((1 << (SETSZ//16384 - 64)) - 1)}")
            self.vmem(f"buffer_load_dword {v(vDUM)}, {v(vT+1)}, {s(sWS,4)}, {s(sT)} offen", "tch")
            e("s_mov_b64 exec, -1")
            for p_, vo in [(sPWO, self.TW), (sPW1, self.TW), (sPW2, self.TW), (sPW3, self.TW + 1), (sPW4, self.TW + 1)]:
                self.vmem(f"global_load_dword {v(vDUM)}, {v(vo)}, {s(p_,2)}", "tch")
        qk_(0, self.CSQ, vRQ, PQ)
        e(f"s_lshl_b32 {s(sT)}, {s(sWAVE)}, 11")
        e(f"s_add_u32 {s(sT)}, {s(sT)}, {XCH}")
        e(f"v_add_u32 {v(vT+1)}, {s(sT)}, {v(vL16)}")
        for q in range(2): self.lds(f"ds_write_b128 {v(vT+1)}, {v(PQ+4*q,4)} offset:{1024*q}", "qw")
        e(f"s_lshl_b32 {s(sT+1)}, {s(sWAVE)}, 12")
        e(f"s_add_u32 {s(sKVB)}, {s(sKVB)}, {s(sT+1)}")
        e(f"s_mov_b32 {s(sNP)}, 1")

    def attention(self):
        e = self.e
        Q, S, T, P, M = V(16), [V(48), V(64)], V(80), V(88), V(96)
        OW = 160
        O = [V(OW), A(16), A(32), A(48)]
        KV, PK = A(64), V(self.PK)
        sOFF = sT + 6
        retry = "L_attn_retry"
        def ldk(dst, tag, so=sOFF):
            return [(f"buffer_load_dwordx4 {dst(4*q,4)}, {v(vL16)}, {s(sWS,4)}, {s(so)} offen offset:{1024*q} sc1", tag) for q in range(2)]
        def ldv(dst, tag):
            return [(f"buffer_load_dwordx4 {dst(8+4*q,4)}, {v(vL16)}, {s(sWS,4)}, {s(sOFF)} offen offset:{2048+1024*q} sc1", tag) for q in range(2)]
        adv = [(f"s_add_u32 {s(sKV)}, {s(sKV)}, 0x4000", None), (f"s_and_b32 {s(sKV)}, {s(sKV)}, 0x3ffff", None),
               (f"s_add_u32 {s(sOFF)}, {s(sKV)}, {s(sKVB)}", None)]
        def zero():
            for i in range(16): e(f"v_mov_b32 {O[0](i)}, 0")
            for j in range(1, 4):
                for i in range(16): e(f"v_accvgpr_write_b32 {O[j](i)}, 0")
            for i in range(4): e(f"v_accvgpr_write_b32 {KV(60+i)}, 0")
            for i in range(8): e(f"v_mov_b32 {P(i)}, 0")
            for i in range(8): e(f"v_mov_b32 {T(i)}, 0")
            for i in range(4): e(f"v_mov_b32 {M(i)}, 0xff800000")
            e(f"s_mov_b32 {s(sCNT)}, 0")
        zero()
        for i in range(4):
            e(f"s_add_u32 {s(sT)}, {s(sWAVE)}, {i}")
            e(f"s_and_b32 {s(sT)}, {s(sT)}, 3")
            e(f"s_lshl_b32 {s(sT)}, {s(sT)}, 11")
            e(f"s_add_u32 {s(sT)}, {s(sT)}, {XCH}")
            e(f"v_add_u32 {v(vT+1+i)}, {s(sT)}, {v(vL16)}")
        e(f"v_mov_b32 {v(vT)}, {s(sPH)}")
        e(f"s_getreg_b32 {s(sT+2)}, hwreg(HW_REG_XCC_ID, 0, 3)")
        e(f"s_add_u32 {s(sT+2)}, {s(sT+2)}, {s(sPH)}")
        e(f"s_add_u32 {s(sT+2)}, {s(sT+2)}, 32")
        e(f"v_mov_b32 {v(vT+6)}, {s(sT+2)}")
        e(f"s_add_u32 {s(sT+2)}, {s(sFLG)}, {XTAB}")
        e(f"s_mov_b32 {s(sMSK)}, 0xffff")
        e(f"s_mov_b32 {s(sMSK+1)}, 0")
        e(f"s_cmp_lg_u32 {s(sWAVE)}, 0")
        self.wait(vm="o", lg=0)
        e("s_barrier")
        lab = self.newlabel("kvf")
        e(f"s_cbranch_scc1 {lab}")
        e("s_mov_b64 exec, 1")
        e(f"buffer_store_dword {v(vT)}, off, {s(sWS,4)}, {s(sKFL)} sc1")
        e(f"buffer_store_dword {v(vT+6)}, off, {s(sWS,4)}, {s(sT+2)} sc1")
        e("s_mov_b64 exec, -1")
        self.label(lab)
        self.stamp('kv_flag')
        e(f"v_and_b32 {v(vT)}, 31, {v(vLANE)}")
        e(f"v_mul_u32_u24 {v(vT+6)}, 896, {v(vT)}")
        e(f"v_lshrrev_b32 {v(vT)}, 5, {v(vLANE)}")
        e(f"v_lshl_add_u32 {v(vT+6)}, {v(vT)}, 4, {v(vT+6)}")
        e(f"s_lshl_b32 {s(sT)}, {s(sLAYER)}, 31")
        e(f"v_or_b32 {v(vT+6)}, {s(sT)}, {v(vT+6)}")
        e(f"s_mul_i32 {s(sT)}, {s(sTB)}, {32*896}")
        e(f"s_lshl_b32 {s(sT+1)}, {s(sNT)}, 6")
        e(f"s_add_u32 {s(sT)}, {s(sT)}, {s(sT+1)}")
        for q in range(2):
            self.vmem(f"buffer_load_dwordx4 {v(XP+4*q,4)}, {v(vT+6)}, {s(sX,4)}, {s(sT)} offen offset:{32*q}", "xo")
        for i in range(4):
            for q in range(2): self.lds(f"ds_read_b128 {Q(8*i+4*q,4)}, {v(vT+1+i)} offset:{1024*q}", "q")
        e(f"v_and_b32 {v(vT+5)}, 31, {v(vLANE)}")
        e(f"v_lshlrev_b32 {v(vT+5)}, 2, {v(vT+5)}")
        self.wait(lg=0)
        pp, ppd = "L_attn_pp", "L_attn_ppd"
        self.label(pp)
        def qk(dst, kf, i):
            self.mfma(dst(0, 16), kf(0, 4), Q(8 * i, 4), "0")
            self.mfma(dst(0, 16), kf(4, 4), Q(8 * i + 4, 4), dst(0, 16))
        def mx(src, i):
            for r in range(8): e(f"v_max3_f32 {M(i)}, {src(2*r)}, {src(2*r+1)}, {M(i)}")
        qk(S[0], PK, 0); qk(S[1], PK, 1)
        self.nop(10)
        mx(S[0], 0); qk(S[0], PK, 2)
        self.nop(2)
        mx(S[1], 1); qk(S[1], PK, 3)
        self.poll_issue(self.KVP)
        self.nop(1)
        mx(S[0], 2)
        self.nop(4)
        mx(S[1], 3)
        e(f"s_add_u32 {s(sCNT)}, {s(sCNT)}, 1")
        e(f"s_cmp_ge_u32 {s(sCNT)}, {s(sNP)}")
        e(f"s_cbranch_scc0 L_attn_next")
        self.label(ppd)
        def nxt_tile():
            self.label(retry)
            zero()
            self.label("L_attn_next")
            e(f"s_lshl_b32 {s(sT)}, {s(sCNT)}, 14")
            e(f"s_add_u32 {s(sT)}, {s(sT)}, {s(sKVB)}")
            for x in ldk(PK, "pk", sT): e(x[0])
            e("s_waitcnt vmcnt(0)")
            e(f"s_branch {pp}")
        self.outofline.append(nxt_tile)
        for i in range(4): e(f"v_mov_b32 {v(vT+i)}, {M(i)}")
        self.nop(1)
        for i in range(4): e(f"v_permlane32_swap_b32 {v(vT+i)}, {M(i)}")
        for i in range(4): e(f"v_max_f32 {M(i)}, {M(i)}, {v(vT+i)}")
        for i in range(4): e(f"v_cvt_pk_bf16_f32 {v(vT+i)}, -{M(i)}, 0")
        for i in range(4): e(f"v_lshlrev_b32 {M(i)}, 16, {v(vT+i)}")
        e("s_mov_b32 exec_lo, 0")
        for i in range(4): e(f"v_mov_b32 {Q(8*i+6)}, {v(vT+i)}")
        e("s_mov_b32 exec_lo, -1")
        e(f"s_lshl_b32 {s(sKV)}, {s(sSET)}, 15")
        e(f"s_add_u32 {s(sOFF)}, {s(sKV)}, {s(sKVB)}")
        self.stamp('at_pp')
        self.poll(0, True, self.KVP)
        self.stamp('at_poll')
        for t in range(4):
            b = KV.at(16 * t)
            for x in ldk(b, f"k{t}"): self.emit1(x)
            if t < 3:
                for x in ldv(b, f"v{t}"): self.emit1(x)
                for x in adv: self.emit1(x)
        self.wait(vm="v0")
        e(f"s_mov_b32 {s(sIT)}, 0")
        qk(S[0], KV, 0)
        self.nop(9)
        self.stamp('at_loop0')

        def body(it, last, fill):
            fill = list(fill)
            for n in range(16):
                jj, i = n >> 2, n & 3
                cur, nx = S[n & 1], S[(n + 1) & 1]
                kb = KV.at(16 * (((n + 1) >> 2) & 3)); qi = (n + 1) & 3
                pb = KV.at(16 * (((n - 1) >> 2) & 3)); po = (n - 1) & 3
                slots = [[], [], [], []]
                tprev = 4 * it + jj - 1 + 4
                if i == 0 and (not last or jj == 0):
                    x = ldv(KV.at(16 * ((jj - 1) & 3)), f"v{tprev}")
                    slots[2].append(x[0]); slots[3].append(x[1])
                if i == 1 and not last:
                    for q in range(3): slots[q].append(adv[q])
                if i == 2 and not last and 'notouch' not in self.opt:
                    slots[0].append((f"buffer_load_dword {v(vDUM)}, {v(vTCH)}, {s(sWS,4)}, {s(sTCH)} offen", "tch"))
                    slots[1].append((f"s_add_u32 {s(sTCH)}, {s(sTCH)}, {TLINES*128}", None))
                if i == 1 and not last and 'notouch' not in self.opt:
                    p_, vo = [(sPWO, self.TW), (sPW1, self.TW), (sPW3, self.TW + 1), (sPW4, self.TW + 1)][jj]
                    slots[3].append((f"global_load_dword {v(vDUM)}, {v(vo)}, {s(p_,2)}", "tch"))
                if i == 0 and not last and 'zst' in self.opt:
                    sz, sl_ = (sZH, sZH + 1) if jj < 3 else (sZX, sZX + 1)
                    slots[0].append((f"buffer_store_dwordx4 {v(vOST,4)}, {v(self.ZO)}, {s(sWS,4)}, {s(sz)} offen sc1", "zst"))
                    slots[1].append((f"s_add_u32 {s(sz)}, {s(sz)}, 1024", None))
                    slots[1].append((f"s_min_u32 {s(sz)}, {s(sz)}, {s(sl_)}", None))
                if n == 6 and not last and 'notouch' not in self.opt:
                    slots[2].append((f"global_load_dword {v(vDUM)}, {v(self.TW)}, {s(sPW2,2)}", "tch"))
                if n == 14 and not last and 'notouch' not in self.opt:
                    slots[2].append((f"v_add_u32 {v(self.TW)}, 128, {v(self.TW)}", None))
                    slots[2].append((f"v_add_u32 {v(self.TW+1)}, 128, {v(self.TW+1)}", None))
                if i == 2 and not (last and jj == 3):
                    slots[3].append(('WAIT', f"v{4*it+jj+1}"))
                if i == 3 and not last:
                    x = ldk(KV.at(16 * jj), f"k{4*it+jj+4}")
                    slots[0].append(x[0]); slots[1].append(x[1])
                if n == 15 and not last:
                    slots[2].append((f"s_add_u32 {s(sIT)}, {s(sIT)}, 1", None))
                    slots[3].append((f"s_cmp_lt_u32 {s(sIT)}, 3", None))
                if last and n >= 1:
                    for q in range(4):
                        if not slots[q]:
                            for _ in range(2):
                                if fill: slots[q].append(fill.pop(0))
                for g in range(4):
                    if g == 0 and not (last and n == 15): self.mfma(nx(0, 16), kb(0, 4), Q(8 * qi, 4), "0")
                    if g == 1 and not (last and n == 15): self.mfma(nx(0, 16), kb(4, 4), Q(8 * qi + 4, 4), nx(0, 16))
                    if g == 2: self.mfma(O[po](0, 16), pb(12, 4), P(4, 4), O[po](0, 16))
                    if g == 3: self.mfma(O[i](0, 16), KV(16 * jj + 8, 4), P(0, 4), O[i](0, 16))
                    for x in slots[g]:
                        if x[0] == 'WAIT': self.wait(vm=x[1])
                        else: self.emit1(x)
                    gp = (g - 1) & 3
                    tp = T.at(4 * (gp & 1))
                    if last and n == 15 and g < 2: self.nop(1)
                    e(f"v_cvt_pk_bf16_f32 {P(2*gp)}, {tp(0)}, {tp(1)}")
                    e(f"v_cvt_pk_bf16_f32 {P(2*gp+1)}, {tp(2)}, {tp(3)}")
                    for r in range(4): e(f"v_exp_f32 {T(4*(g&1)+r)}, {cur(4*g+r)}")
            for x in fill: self.emit1(x)

        loop = "L_attn_loop"
        self.label(loop)
        n0 = len(self.lines)
        body(0, False, [])
        ref = self.lines[n0:]
        for it in (1, 2):
            n1 = len(self.lines)
            body(it, False, [])
            other = self.lines[n1:]
            del self.lines[n1:]
            assert len(other) == len(ref)
            for k, (x, y) in enumerate(zip(ref, other)):
                if x != y:
                    nx_, ny_ = (int(re.fullmatch(r"\s*s_waitcnt vmcnt\((\d+)\)", z).group(1)) for z in (x, y))
                    ref[k] = self.lines[n0 + k] = f"    s_waitcnt vmcnt({min(nx_, ny_)})"
        e(f"s_cbranch_scc1 {loop}")
        fill = [(f"buffer_load_dword {v(vPF)}, {v(vT+5)}, {s(sWS,4)}, {s(sXT)} offen sc1", "xt")]
        if 'nolate' not in self.opt:
            fill.append((f"buffer_load_dword {v(vDUM)}, {v(vTCO)}, {s(sWS,4)}, 0 offen sc1", "tch"))
        for it_ in self.with_init(self.dma_g8(sPWO, 448 * 896, 896, sCS, 128, 0, S0, S1, vG8, "wo")) + \
                   self.with_init(self.dma_g8(sPW1, 448 * 896, 896, sCS, 128, 0, S2, S3, vG8, "w1")): fill += it_
        self.stamp('at_it3')
        body(3, True, fill)
        self.nop(1)
        e(f"v_cvt_pk_bf16_f32 {P(6)}, {T(4)}, {T(5)}")
        e(f"v_cvt_pk_bf16_f32 {P(7)}, {T(6)}, {T(7)}")
        e(f"s_mov_b32 {s(sT)}, 0")
        e(f"v_mov_b32 {v(vT+4)}, {fx(2.0**30)}")
        self.mfma(O[3](0, 16), KV(60, 4), P(4, 4), O[3](0, 16))
        self.stamp('at_loop1')
        ok = "L_attn_ok"
        e(f"v_cmp_nlt_f32 vcc, {O[0](12)}, {v(vT+4)}")
        e(f"v_accvgpr_read_b32 {v(vT+1)}, {O[1](12)}")
        e(f"s_or_b32 {s(sT)}, {s(sT)}, vcc_hi")
        e(f"v_cmp_nlt_f32 vcc, {v(vT+1)}, {v(vT+4)}")
        e(f"v_accvgpr_read_b32 {v(vT+2)}, {O[2](12)}")
        e(f"s_or_b32 {s(sT)}, {s(sT)}, vcc_hi")
        e(f"v_cmp_nlt_f32 vcc, {v(vT+2)}, {v(vT+4)}")
        e("s_mov_b32 exec_lo, 0")
        e(f"s_or_b32 {s(sT)}, {s(sT)}, vcc_hi")
        for i in range(1, 3): e(f"v_accvgpr_write_b32 {O[i](13)}, {M(i)}")
        e("s_mov_b32 exec_lo, -1")
        e(f"v_accvgpr_read_b32 {v(vT+3)}, {O[3](12)}")
        e("s_mov_b32 exec_lo, 0")
        e(f"v_accvgpr_write_b32 {O[3](13)}, {M(3)}")
        e("s_mov_b32 exec_lo, -1")
        e(f"v_cmp_nlt_f32 vcc, {v(vT+3)}, {v(vT+4)}")
        e(f"s_or_b32 {s(sT)}, {s(sT)}, vcc_hi")
        e(f"s_cmp_eq_u32 {s(sT)}, 0")
        e(f"s_cbranch_scc0 L_attn_ovf")
        self.label(ok)
        def ovf():
            self.label("L_attn_ovf")
            e(f"s_cmp_lg_u32 {s(sNP)}, 1")
            e(f"s_cbranch_scc1 {ok}")
            e(f"s_mov_b32 {s(sNP)}, 16")
            e("s_mov_b32 exec_lo, 0")
            for i in range(4): e(f"v_mov_b32 {Q(8*i+6)}, 0")
            e("s_mov_b32 exec_lo, -1")
            e("s_waitcnt vmcnt(0)")
            e(f"s_branch {retry}")
        self.outofline.append(ovf)
        RB = 112
        sv = [self.CW + i for i in range(3)]
        for i in range(1, 4):
            for q in range(4):
                self.lds(f"ds_write_b128 {v(sv[i-1])}, {O[i](4*q,4)} offset:{1024*q}", "cw")
        mlp, mok = "L_mode_loop", "L_mode_ok"
        e(f"s_add_u32 {s(sPV)}, {s(sPH)}, 32")
        self.wait(vm="xt")
        e(f"v_subrev_u32 {v(vPF)}, {s(sPV)}, {v(vPF)}")
        e(f"v_cmp_lt_u32 vcc, 7, {v(vPF)}")
        e(f"s_cmp_eq_u64 vcc, 0")
        e(f"s_cbranch_scc0 {mlp}")
        self.label(mok)
        def modeloop():
            self.label(mlp)
            e(f"s_mov_b32 {s(sSPIN)}, 0")
            l2 = self.newlabel("ml")
            self.label(l2)
            e(f"s_add_u32 {s(sSPIN)}, {s(sSPIN)}, 1")
            e(f"s_cmp_ge_u32 {s(sSPIN)}, {SPIN_MAX}")
            e(f"s_cbranch_scc1 {mok}")
            e(f"buffer_load_dword {v(vPF)}, {v(vT+5)}, {s(sWS,4)}, {s(sXT)} offen sc1")
            e("s_waitcnt vmcnt(0)")
            e(f"v_subrev_u32 {v(vPF)}, {s(sPV)}, {v(vPF)}")
            e(f"v_cmp_lt_u32 vcc, 7, {v(vPF)}")
            e(f"s_cmp_eq_u64 vcc, 0")
            e(f"s_cbranch_scc0 {l2}")
            e(f"s_branch {mok}")
        self.outofline.append(modeloop)
        e(f"v_readfirstlane_b32 {s(sT)}, {v(vPF)}")
        self.wait(lg=0)
        e("s_barrier")
        for j in range(3):
            self.lds(f"ds_read_b128 {v(RB+16*j+12,4)}, {v(self.CW+3)} offset:{4096*j+3072}", f"crm")
        for j in range(3):
            for q in range(3):
                self.lds(f"ds_read_b128 {v(RB+16*j+4*q,4)}, {v(self.CW+3)} offset:{4096*j+1024*q}", f"cr{j}")
        e(f"v_cmp_ne_u32 vcc, {s(sT)}, {v(vPF)}")
        e(f"s_mov_b32 {s(sMODE)}, vcc_lo")
        if self.force_slow: e(f"s_mov_b32 {s(sMODE)}, 1")
        NM, F = 180, 184
        e(f"v_mov_b32 {v(NM)}, {M(0)}")
        self.wait(lg="crm")
        for j in range(3):
            e(f"v_mov_b32 {v(vT+j)}, {v(RB+16*j+13)}")
            e(f"v_mov_b32 {v(NM+1+j)}, {v(RB+16*j+13)}")
        self.nop(1)
        for j in range(3): e(f"v_permlane32_swap_b32 {v(vT+j)}, {v(NM+1+j)}")
        e(f"v_min3_f32 {v(vT+3)}, {v(NM)}, {v(NM+1)}, {v(NM+2)}")
        e(f"v_min_f32 {v(vT+3)}, {v(vT+3)}, {v(NM+3)}")
        for j in range(4): e(f"v_sub_f32 {v(F+j)}, {v(vT+3)}, {v(NM+j)}")
        for j in range(4): e(f"v_exp_f32 {v(F+j)}, {v(F+j)}")
        e(f"v_mul_f32 {v(vT)}, {v(F)}, {v(OW+12)}")
        for j in range(3): e(f"v_fmac_f32 {v(vT)}, {v(F+1+j)}, {v(RB+16*j+12)}")
        e(f"v_mov_b32 {v(vT+1)}, {v(vT)}")
        self.nop(2)
        e(f"v_permlane32_swap_b32 {v(vT+1)}, {v(vT)}")
        e(f"v_rcp_f32 {v(vT)}, {v(vT)}")
        self.nop(1)
        for j in range(4): e(f"v_mul_f32 {v(F+j)}, {v(F+j)}, {v(vT)}")
        for i in range(0, 16, 2): e(pk('mul', OW + i, OW + i, F, bc=(1,)))
        for j in range(3):
            self.wait(lg=f"cr{j}")
            for i in range(0, 16, 2): e(pk('fma', OW + i, RB + 16 * j + i, F + 1 + j, OW + i, bc=(1,)))
        for x in self.pack16(RB, OW): e(x)
        def st(f):
            for q in range(4):
                if q == 3: e("s_mov_b32 exec_hi, 0")
                self.vmem(f"buffer_store_dwordx2 {v(RB+2*q,2)}, {v(vOST+q)}, {s(sWS,4)}, 0 offen{f}", "o")
            e("s_mov_b32 exec_hi, -1")
        self.moded(st)
        self.signal(1)

    def tile_addr(self, sdst, region):
        self.e(f"s_add_u32 {s(sdst)}, {s(sTILE)}, {region}")
    def stat_addr(self, sdst, region):
        self.e(f"s_add_u32 {s(sdst)}, {s(sSTAT)}, {region}")
    def keep_send_addr(self, lds, khstride, d0=vA0, d1=vA1):
        e = self.e
        e(f"s_mul_i32 {s(sT)}, {s(sKH)}, {khstride + 512}")
        if lds: e(f"s_add_u32 {s(sT)}, {s(sT)}, {lds}")
        e(f"v_add_u32 {v(d0)}, {s(sT)}, {v(vTR)}")
        e(f"v_xor_b32 {v(d1)}, 512, {v(d0)}")
    def wregs(self, kind):
        self.keep_send_addr({'wo': S0, 'w1': S2, 'w2': S0}[kind], SLOT)
        for q in range(14):
            for t in range(2):
                for x in self.tr2(A(8 * q + 4 * t), [vA0, vA1][t], q * 2048, 1024, "wr"): self.emit1(x)
    def xch_write(self, send):
        for q in range(4): self.lds(f"ds_write_b128 {v(vXW)}, {v(send+4*q,4)} offset:{1024*q}", "xw")
    def xch_read(self, recv):
        self.wait(lg=0)
        self.e("s_barrier")
        for q in range(4): self.lds(f"ds_read_b128 {v(recv+4*q,4)}, {v(vXR)} offset:{1024*q}", f"xr{q}")
    def xch_add(self, dst, keep, recv):
        for q in range(4):
            self.wait(lg=f"xr{q}")
            for i in (0, 2): self.e(pk('add', dst + 4 * q + i, keep + 4 * q + i, recv + 4 * q + i))

    def small(self, kind):
        e = self.e
        W, B = A(0), A(112)
        K_, S_, RV, STT, CS, TMP, PKD, Y = 32, 48, 64, 80, 96, 112, 144, 152
        ph = {'wo': 1, 'w1': 2, 'w2': 3}[kind]
        self.c(f"================ {kind}")
        if kind == 'wo':
            self.wregs('wo')
        src = {'wo': OF, 'w1': XA, 'w2': HF}[kind]
        vB = [vT + 3, vT + 4]
        if kind != 'w2':
            e(f"s_add_u32 {s(sT+2)}, {s(sBB)}, {src}")
            e(f"v_add_u32 {v(vT+3)}, {s(sT+2)}, {v(vL16)}")
            vB = [vT + 3, vT + 3]
        else:
            vB = [self.HB, self.HB + 1]
        outr = {'wo': XA, 'w1': HF, 'w2': X1}[kind]
        self.tile_addr(sOUT, outr)
        if kind != 'w1': self.stat_addr(sSTO, {'wo': STA, 'w2': ST1}[kind])
        if kind == 'wo':
            e(f"s_lshr_b32 {s(sT+1)}, {s(sRB4)}, 1")
            self.setmask(0xffff, sT + 1, 16)
            init, dma = self.dma_g8(sPW2, 448 * 896, 896, sCS, 128, 0, S0, S1, vG8, "w2")
        elif kind == 'w1':
            self.setmask(0x7f, sRB4, 7)
            self.stats_base(sSTO, STA, sTB)
            init, dma = self.dma_g8(sPW3, 448 * 3584, 3584, sFS, 256, 0, S2, S3, self.G3, "w3a")
        else:
            e(f"s_mov_b32 {s(sMSK)}, {s(sM2)}")
            e(f"s_mov_b32 {s(sMSK+1)}, {s(sHM)}")
            init, dma = self.dma_g8(sPW3, 448 * 3584, 3584, sFS, 256, 128, S4, S0, self.G3, "w3b")
        for x in init: e(x)
        issued = False
        if kind == 'wo':
            l1, l2 = self.newlabel("xr1"), self.newlabel("xr2")
            e(f"s_cmp_lg_u32 {s(sLAYER)}, 0")
            e(f"s_cbranch_scc1 {l1}")
            for i in (0, 1, 4, 5): e(f"v_permlane32_swap_b32 {v(XP+i)}, {v(XP+i+2)}")
            for i in range(8):
                e(f"v_lshlrev_b32 {v(vX+2*i)}, 16, {v(XP+i)}")
                e(f"v_and_b32 {v(vX+2*i+1)}, 0xffff0000, {v(XP+i)}")
            self.label(l2)
            def x1():
                self.label(l1)
                for i in range(16): e(f"v_accvgpr_read_b32 {v(vX+i)}, {a(200+i)}")
                e(f"s_branch {l2}")
            self.outofline.append(x1)
            self.wait(lg=0)
        elif kind == 'w1':
            ONE, CSS = A(176), A(180)
            self.ones(ONE)
            self.nop(2)
            for q in range(14):
                self.mfma(CSS(0, 16), W(8 * q + 4, 4), ONE(0, 4), "0" if q == 0 else CSS(0, 16))
            for q in range(14):
                self.mfma(v(CS, 16), W(8 * q, 4), ONE(0, 4), "0" if q == 0 else v(CS, 16))
                if q == 2:
                    self.cs_write(CSS)
                if q == 6:
                    self.poll_issue(); issued = True
            e(f"s_xor_b32 {s(sT)}, {s(sWAVE)}, 2")
            e(f"s_lshl_b32 {s(sT)}, {s(sT)}, 7")
            e(f"v_add_u32 {v(vT+5)}, {s(sT)}, {v(vCSA)}")
            self.wait(lg=0)
        else:
            e(f"v_mul_f32 {v(TMP)}, {v(vMEAN)}, {v(vR1)}")
            for i in range(0, 16, 2): e(pk('fma', Y + i, vX + i, vR1, TMP, bc=(1, 2), neg=(2,)))
        self.poll(ph, issued, self.P2 if kind == 'w2' else vPOLL)
        self.stamp(kind + '_poll')
        bl = [(f"buffer_load_dwordx4 {B(4*q,4)}, {v(vB[q//7])}, {s(sWS,4)}, {self.c4(q//4)} offen offset:{1024*(q%4)} sc1", f"b{q}") for q in range(14)]
        fill = {}
        if kind == 'w1':
            st = self.stats_loads(STT, sSTO)
            rest = self.burst(bl[:2] + st + bl[2:], [2, 4, 4])
            vNM, vGA, vGB, vIR, vRR = STT + 2, STT + 3, STT + 4, STT + 5, STT + 6
            sf = self.cs_reads(RV, 0, vT + 5) + self.stats_sum(STT) + self.stats_finish(STT, STT + 1) + [
                f"v_add_f32 {v(vRR)}, {fx(EPS)}, {v(STT+1)}", f"v_rsq_f32 {v(vR1)}, {v(vRR)}",
                f"v_sub_f32 {v(vNM)}, 0, {v(vMEAN)}", f"v_mul_f32 {v(vRR)}, {v(vR1)}, {v(vR1)}",
                f"v_mov_b32 {v(vGA)}, {fx(EPS)}", f"v_fmac_f32 {v(vGA)}, {v(vRR)}, {v(STT+1)}",
                f"v_rsq_f32 {v(vRR)}, {v(vGA)}", "s_nop 0", f"v_mul_f32 {v(vRR)}, {v(vRR)}, {v(vR1)}"] + \
                self.gelu_consts(vRR, vGA, vGB, vIR) + ["s_waitcnt lgkmcnt(0)"] + \
                [f"v_add_f32 {v(CS+i)}, {v(CS+i)}, {v(RV+i)}" for i in range(16)]
            fill = {2 + i: sf[6 * i:6 * i + 6] for i in range((len(sf) + 5) // 6)}
            assert max(fill) <= 13
        else:
            rest = self.burst(bl, [3, 3, 2])
        for q in range(14):
            self.wait(vm=[f"b{q}", "st"] if q == 2 else f"b{q}")
            if q == 0: self.stamp(kind + '_b0')
            fl = fill.get(q, [])
            for t in (1, 0):
                acc = v([K_, S_][t], 16)
                self.mfma(acc, W(8 * q + 4 * t, 4), B(4 * q, 4), "0" if q == 0 else acc)
                if t == 1:
                    if rest: self.emit1(rest.pop(0))
                    elif q < 13: self.emit_item(dma.pop(0))
                for x in fl[3 * (1 - t):3 * (1 - t) + 3]: self.emit1(x)
        self.lg = []
        self.stamp(kind + '_kloop')
        self.emit_item(dma.pop(0))
        self.nop(8)
        self.xch_write(S_)
        if kind == 'wo': pre = [pk('add', vX + i, vX + i, K_ + i) for i in range(0, 16, 2)]
        elif kind == 'w1': pre = [pk('fma', K_ + i, vNM, CS + i, K_ + i, bc=(0,)) for i in range(0, 16, 2)]
        else: pre = [pk('add', K_ + i, K_ + i, Y + i) for i in range(0, 16, 2)]
        self.weave(pre, dma, 8)
        self.xch_read(RV)
        self.emit_item(dma.pop(0))
        self.stamp(kind + '_xch')
        def st_tile(f):
            for q in range(2):
                self.vmem(f"buffer_store_dwordx4 {v(PKD+4*q,4)}, {v(vL16)}, {s(sWS,4)}, {s(sOUT)} offen offset:{1024*q}{f}", "o")
        def st_stat(f):
            self.vmem(f"buffer_store_dword {v(TMP)}, {v(vL16)}, {s(sWS,4)}, {s(sSTO)} offen{f}", "o")
        if kind == 'w1':
            self.xch_add(K_, K_, RV)
            self.weave(self.gelu_pk(K_, None, TMP, PKD, vNM, vGA, vGB, vIR), dma, 12)
            self.emit_items(dma)
            nh = self.newlabel("nohalo")
            e(f"s_cmp_eq_u32 {s(sHX)}, 0")
            e(f"s_cbranch_scc1 {nh}")
            e(f"s_mov_b32 exec_lo, {s(sHX)}")
            e(f"s_mov_b32 exec_hi, {s(sHX)}")
            e(f"s_add_u32 {s(sT+3)}, {s(sOUT)}, {s(sHD)}")
            for q in range(2):
                e(f"buffer_store_dwordx4 {v(PKD+4*q,4)}, {v(vL16)}, {s(sWS,4)}, {s(sT+3)} offen offset:{1024*q} sc1")
            e("s_mov_b64 exec, -1")
            self.label(nh)
            self.moded(st_tile)
        else:
            dst = vX if kind == 'wo' else K_
            self.xch_add(dst, dst, RV)
            for x in self.pack16(PKD, dst): e(x)
            self.moded(st_tile)
            self.weave(self.stats_partial(dst, TMP), dma, 6)
            self.moded(st_stat)
            self.emit_items(dma)
            if kind == 'w2':
                for i in range(0, 16, 2): e(pk('add', vX + i, vX + i, K_ + i))
        if kind != 'w2': self.wregs({'wo': 'w1', 'w1': 'w2'}[kind])
        self.signal(ph + 1, halo=(kind == 'w1'))

    def w3(self):
        e = self.e
        self.c("================ w3")
        B, AF = A(0), A(128)
        ACC = [32, 48, 64, 80]
        CS, STT, TMP, PKD = [96, 112], 128, 144, [160, 168]
        vM3 = STT + 7
        e(f"s_lshl_b32 {s(sT+2)}, {s(sSET)}, 3")
        e(f"s_lshl_b32 {s(sT+3)}, {s(sRB2)}, 2")
        e(f"s_add_u32 {s(sT+2)}, {s(sT+2)}, {s(sT+3)}")
        e(f"s_add_u32 {s(sT+6)}, {s(sT+2)}, {s(sWAVE)}")
        e(f"s_mul_i32 {s(sT+2)}, {s(sT+6)}, {SLOT}")
        e(f"s_add_u32 {s(sT+2)}, {s(sT+2)}, {s(sLB)}")
        e(f"s_add_u32 {s(sT+2)}, {s(sT+2)}, {X1}")
        e(f"v_add_u32 {v(vT+3)}, {s(sT+2)}, {v(vL16)}")
        e(f"s_mul_i32 {s(sT+5)}, {s(sT+6)}, {112*1024}")
        e(f"s_lshl_b32 {s(sT+3)}, {s(sFS)}, 13")
        e(f"s_add_u32 {s(sT+5)}, {s(sT+5)}, {s(sT+3)}")
        e(f"s_add_u32 {s(sT+5)}, {s(sT+5)}, {s(sLBH)}")
        e(f"s_add_u32 {s(sOUT)}, {s(sT+5)}, {HH}")
        e(f"v_add_u32 {v(vT+4)}, {s(sOUT)}, {v(vL16)}")
        self.stats_base(sSTO, ST1, sT + 6)
        self.setmask(0x3fff, sRB2, 14)
        self.w4_bases()
        e(f"s_and_b32 {s(sT+1)}, {s(sWAVE)}, 1")
        e(f"s_lshl_b32 {s(sT+1)}, {s(sT+1)}, 9")
        e(f"s_mov_b32 {s(sT+2)}, {S4}")
        e(f"s_cmp_lt_u32 {s(sWAVE)}, 2")
        e(f"s_cselect_b32 {s(sT+2)}, {S2}, {s(sT+2)}")
        e(f"s_cselect_b32 {s(sT+3)}, {S3}, {S0}")
        e(f"v_add_u32 {v(vT+1)}, {s(sT+1)}, {v(vTR)}")
        e(f"v_add_u32 {v(vT+2)}, {s(sT+3)}, {v(vT+1)}")
        e(f"v_add_u32 {v(vT+1)}, {s(sT+2)}, {v(vT+1)}")
        self.colsum_lds(vT + 1, vT + 2, 2048, 1024, mid=self.poll_issue)
        e(f"v_add_u32 {v(vA0)}, {S2}, {v(vTR)}")
        e(f"v_add_u32 {v(vA1)}, {S4}, {v(vTR)}")
        def aread(p, q):
            out = []
            if p == 0: va, off = vA0, q * 2048
            elif q < 14: va, off = vA1, q * 2048
            else: va, off = vTR, S0 + (q - 14) * 2048
            for t in range(2): out += self.tr2(AF.at(8 * ((q + 28 * p) % 3) + 4 * t), va, off + 512 * t, 1024, f"a{p}_{q}")
            return out
        for q in range(2):
            for x in aread(0, q): self.emit1(x)
        self.poll(4, True)
        self.stamp('w3_poll')
        bl = [(f"buffer_load_dwordx4 {B(4*q,4)}, {v(vT+3)}, {s(sWS,4)}, {self.c4(q//4)} offen offset:{1024*(q%4)} sc1", f"b{q}") for q in range(28)]
        st = self.stats_loads(STT, sSTO)
        rest = self.burst(bl[:3] + st + bl[3:], [3, 4, 5])
        rest = [[x] for x in rest]
        if 'hhlate' in self.opt:
            e(f"v_lshlrev_b32 {v(vT+5)}, 7, {v(vLANE)}")
            rest.append([(f"buffer_load_dword {v(vDUM)}, {v(vT+5)}, {s(sWS,4)}, {s(sOUT)} offen sc1", "tch")])
        rest += self.with_init(self.dma_w4chunk(0, S1, "c0"))
        vNM, vGA, vGB, vIR, vRR = STT + 2, STT + 3, STT + 4, STT + 5, STT + 6
        sf = self.stats_sum(STT) + self.stats_finish(STT, STT + 1, vM3) + [
            f"v_add_f32 {v(vRR)}, {fx(EPS)}, {v(STT+1)}", f"v_rsq_f32 {v(vRR)}, {v(vRR)}",
            f"v_sub_f32 {v(vNM)}, 0, {v(vM3)}"] + self.gelu_consts(vRR, vGA, vGB, vIR)
        fill = {4 + i: sf[4 * i:4 * i + 4] for i in range((len(sf) + 3) // 4)}
        fill[14] = self.cs_reads(CS[0], 0); fill[16] = self.cs_reads(CS[1], 128)
        def store(t):
            def f_(f):
                for q in range(2):
                    off = 2048 * t + 1024 * q
                    self.vmem(f"buffer_store_dwordx4 {v(PKD[t&1]+4*q,4)}, {v(vT+4)}, {s(sWS,4)}, {self.c4(off//4096)} offen offset:{off%4096}{f}", "o")
            self.moded(f_)
        g = []
        for p in range(2):
            for q in range(28):
                if p == 1 and q == 16:
                    e("s_barrier")
                    rest += self.with_init(self.dma_w4chunk(3, S4, "c3"))
                self.wait(vm=([f"b{q}", "st"] if q == 4 else f"b{q}") if p == 0 else None, lg=f"a{p}_{q}")
                if q + 2 < 28: nxt = aread(p, q + 2)
                elif p == 0: nxt = aread(1, q + 2 - 28)
                else: nxt = []
                fl = list(fill.get(q, [])) if p == 0 else []
                if p == 1 and q == 1:
                    g = self.gelu_scalar(ACC[0], CS[0], TMP, PKD[0], vNM, vGA, vGB, vIR)
                for t in range(2):
                    acc = v(ACC[2 * p + t], 16)
                    self.mfma(acc, AF(8 * ((q + 28 * p) % 3) + 4 * t, 4), B(4 * q, 4), "0" if q == 0 else acc)
                    for x in nxt[2 * t:2 * t + 2]: self.emit1(x)
                    if t == 0 and rest: self.emit_item(rest.pop(0))
                    for x in fl[2 * t:2 * t + 2]: self.emit1(x)
                    for _ in range(2 + t):
                        if g: e(g.pop(0))
            if p == 0:
                self.stamp('w3_pa')
                e("s_barrier")
                rest += self.with_init(self.dma_w4chunk(1, S2, "c1")) + self.with_init(self.dma_w4chunk(2, S3, "c2"))
        self.stamp('w3_pb')
        for x in g: e(x)
        store(0)
        for x in self.cs_reads(CS[0], 256): self.emit1(x)
        self.emit_items(rest)
        for t in (1, 2, 3):
            self.wait(lg=0)
            for x in self.gelu_pk(ACC[t], CS[t & 1], TMP, PKD[t & 1], vNM, vGA, vGB, vIR): e(x)
            if t == 1:
                for x in self.cs_reads(CS[1], 384): self.emit1(x)
            store(t)
        self.signal(5)

    def w4(self):
        e = self.e
        self.c("================ w4")
        B, AF = A(0), A(128)
        K_, S_, RV, TMP, PKD = 32, 48, 64, 112, 144
        slots = [S1, S2, S3, S4, S0, S1, S2, S3]
        AD = 80
        self.poll_issue()
        self.keep_send_addr(0, 14336)
        sl = {S0: 0, S1: 1, S2: 2, S3: 3, S4: 4}
        for b_, i in sl.items():
            e(f"v_add_u32 {v(AD+2*i)}, {b_}, {v(vA0)}")
            e(f"v_add_u32 {v(AD+2*i+1)}, {b_}, {v(vA1)}")
        e(f"s_mul_i32 {s(sT+2)}, {s(sTB)}, {112*1024}")
        e(f"s_mul_i32 {s(sT+3)}, {s(sKH)}, {56*1024}")
        e(f"s_add_u32 {s(sT+2)}, {s(sT+2)}, {s(sT+3)}")
        e(f"s_add_u32 {s(sT+2)}, {s(sT+2)}, {s(sLBH)}")
        e(f"s_add_u32 {s(sT+2)}, {s(sT+2)}, {HH}")
        e(f"v_add_u32 {v(vT+3)}, {s(sT+2)}, {v(vL16)}")
        e(f"v_add_u32 {v(vT+4)}, {28*1024}, {v(vT+3)}")
        self.tile_addr(sOUT, XF); self.stat_addr(sSTO, STF)
        self.wimg_bases()
        def aread(q):
            c, r = divmod(q, 7)
            i = sl[slots[c]]
            out = []
            for t in range(2): out += self.tr2(AF.at(8 * (q % 3) + 4 * t), AD + 2 * i + t, r * 2048, 1024, f"a{q}")
            return out
        def bload(q):
            r = q % 28
            return (f"buffer_load_dwordx4 {B(4*r,4)}, {v(vT+3+q//28)}, {s(sWS,4)}, {self.c4(r//4)} offen offset:{1024*(r%4)} sc1", f"b{q}")
        for q in range(2):
            for x in aread(q): self.emit1(x)
        self.poll(5, True)
        self.stamp('w4_poll')
        self.burst([bload(q) for q in range(10)], [3, 3, 4])
        nb = 10
        dq = self.with_init(self.dma_w4chunk(4, S0, "c4"))
        for q in range(56):
            c, r = divmod(q, 7)
            if r == 0 and c in (2, 4, 6): self.stamp(f'w4_c{c}')
            if r == 4 and 1 <= c <= 6:
                self.emit_items(dq); dq = []
                if c + 1 >= 4: self.wait(vm=f"c{c+1}")
                e("s_barrier")
                if c <= 3: dq = self.with_init(self.dma_w4chunk(c + 4, slots[c + 4], f"c{c+4}"))
            self.wait(vm=f"b{q}", lg=f"a{q}")
            nxt = aread(q + 2) if q + 2 < 56 else []
            for t in (1, 0):
                acc = v([K_, S_][t], 16)
                self.mfma(acc, AF(8 * (q % 3) + 4 * t, 4), B(4 * (q % 28), 4), "0" if q == 0 else acc)
                for x in nxt[2 * (1 - t):2 * (1 - t) + 2]: self.emit1(x)
                if t == 1 and nb < 56 and nb < q + 14:
                    self.emit1(bload(nb)); nb += 1
                if t == 0:
                    if dq: self.emit_item(dq.pop(0))
                    elif nb < 56 and nb < q + 14:
                        self.emit1(bload(nb)); nb += 1
        assert nb == 56 and not dq
        self.stamp('w4_kloop')
        fin = "L_final"
        e(f"s_cmp_lg_u32 {s(sLAYER)}, 0")
        e(f"s_cbranch_scc1 {fin}")
        lg0, vm0 = list(self.lg), list(self.vm)
        dq = self.dma_wimg(0, S4) + self.dma_wimg(1, S0) + self.dma_wimg(2, S1) + self.dma_wimg_cs()
        self.nop(9)
        self.xch_write(S_)
        for i in range(0, 16, 2): e(pk('add', vX + i, vX + i, K_ + i))
        self.xch_read(RV)
        self.xch_add(vX, vX, RV)
        for x in self.pack16(PKD, vX): e(x)
        def st_tile(f):
            for q in range(2):
                self.vmem(f"buffer_store_dwordx4 {v(PKD+4*q,4)}, {v(vL16)}, {s(sWS,4)}, {s(sOUT)} offen offset:{1024*q}{f}", "o")
        def st_stat(f):
            self.vmem(f"buffer_store_dword {v(TMP)}, {v(vL16)}, {s(sWS,4)}, {s(sSTO)} offen{f}", "o")
        self.moded(st_tile)
        for x in self.stats_partial(vX, TMP): e(x)
        self.moded(st_stat)
        for _ in range(6): self.emit_item(dq.pop(0))
        for i in range(16): e(f"v_accvgpr_write_b32 {a(200+i)}, {v(vX+i)}")
        self.signal(6, tags="o")
        self.emit_items(dq)
        self.vm = []
        e("s_branch L_qkv")
        def final():
            self.label(fin)
            self.lg, self.vm = lg0, vm0
            self.srd(sX, sPOUT, 2048 * 896)
            self.rowmajor_addr(vT + 1)
            self.xch_write(S_)
            for i in range(0, 16, 2): e(pk('add', vX + i, vX + i, K_ + i))
            self.xch_read(RV)
            self.xch_add(vX, vX, RV)
            for x in self.pack16(PKD, vX): e(x)
            for q in range(4):
                e(f"buffer_store_dwordx2 {v(PKD+2*q,2)}, {v(vT+1)}, {s(sX,4)}, {s(sT)} offen offset:{16*q}")
            self.stamp('w4_end')
            e("s_branch L_end")
            self.lg, self.vm = [], []
        self.outofline.append(final)

    def rowmajor_addr(self, dst):
        e = self.e
        e(f"v_and_b32 {v(vT)}, 31, {v(vLANE)}")
        e(f"v_mul_u32_u24 {v(dst)}, 896, {v(vT)}")
        e(f"v_lshrrev_b32 {v(vT)}, 5, {v(vLANE)}")
        e(f"v_lshl_add_u32 {v(dst)}, {v(vT)}, 3, {v(dst)}")
        e(f"s_mul_i32 {s(sT)}, {s(sTB)}, {32*896}")
        e(f"s_lshl_b32 {s(sT+1)}, {s(sNT)}, 6")
        e(f"s_add_u32 {s(sT)}, {s(sT)}, {s(sT+1)}")

    def roles(self):
        e = self.e
        self.setup2()
        e(f"s_mul_i32 {s(sRB4)}, {s(sR)}, 37")
        e(f"s_lshr_b32 {s(sRB4)}, {s(sRB4)}, 8")
        e(f"s_mul_i32 {s(sT)}, {s(sRB4)}, 7")
        e(f"s_sub_u32 {s(sCS)}, {s(sR)}, {s(sT)}")
        e(f"s_lshr_b32 {s(sRB2)}, {s(sRB4)}, 1")
        e(f"s_mul_i32 {s(sT)}, {s(sRB2)}, 14")
        e(f"s_sub_u32 {s(sFS)}, {s(sR)}, {s(sT)}")
        e(f"s_and_b32 {s(sTT)}, {s(sWAVE)}, 1")
        e(f"s_lshr_b32 {s(sKH)}, {s(sWAVE)}, 1")
        e(f"s_lshl_b32 {s(sTB)}, {s(sSET)}, 3")
        e(f"s_lshl_b32 {s(sT)}, {s(sRB4)}, 1")
        e(f"s_add_u32 {s(sT)}, {s(sT)}, {s(sTT)}")
        e(f"s_add_u32 {s(sTB)}, {s(sTB)}, {s(sT)}")
        e(f"s_cmp_eq_u32 {s(sT)}, 0")
        e(f"s_cselect_b32 {s(sHX)}, 3, 0")
        e(f"s_cmp_eq_u32 {s(sT)}, 7")
        e(f"s_cselect_b32 {s(sHX)}, 0xc0000000, {s(sHX)}")
        e(f"s_lshl_b32 {s(sNT)}, {s(sCS)}, 1")
        e(f"s_add_u32 {s(sNT)}, {s(sNT)}, {s(sKH)}")
        e(f"s_mov_b32 {s(sT+1)}, {LB0}")
        e(f"s_mul_i32 {s(sLB)}, {s(sSET)}, {SETSZ - U}")
        e(f"s_add_u32 {s(sLB)}, {s(sLB)}, {s(sT+1)}")
        e(f"s_mul_i32 {s(sLBS)}, {s(sSET)}, {SETSZ - 32768}")
        e(f"s_add_u32 {s(sLBS)}, {s(sLBS)}, {s(sT+1)}")
        e(f"s_mul_i32 {s(sLBH)}, {s(sSET)}, {SETSZ - 4*U}")
        e(f"s_add_u32 {s(sLBH)}, {s(sLBH)}, {s(sT+1)}")
        e(f"s_sub_u32 {s(sHD)}, {HF2G - HF}, {s(sLB)}")
        e(f"s_mul_i32 {s(sTCH)}, {s(sSET)}, {SETSZ}")
        e(f"s_add_u32 {s(sTCH)}, {s(sTCH)}, {s(sT+1)}")
        e(f"s_lshl_b32 {s(sT+1)}, {s(sR)}, 2")
        e(f"s_add_u32 {s(sT+1)}, {s(sT+1)}, {s(sWAVE)}")
        e(f"s_mul_i32 {s(sT+1)}, {s(sT+1)}, {TSZ // 128}")
        e(f"s_add_u32 {s(sTCH)}, {s(sTCH)}, {s(sT+1)}")
        e(f"v_lshlrev_b32 {v(vTCH)}, 7, {v(vLANE)}")
        e(f"s_mov_b32 exec_lo, {hex((0xffffffff << TLINES) & 0xffffffff)}")
        e(f"v_bfrev_b32 {v(vTCH)}, 1")
        e("s_mov_b32 exec_lo, -1")
        e(f"s_mul_i32 {s(sBB)}, {s(sTB)}, {SLOT}")
        e(f"s_add_u32 {s(sBB)}, {s(sBB)}, {s(sLB)}")
        e(f"s_lshl_b32 {s(sT+1)}, {s(sNT)}, 11")
        e(f"s_add_u32 {s(sTILE)}, {s(sBB)}, {s(sT+1)}")
        e(f"s_mul_i32 {s(sT+1)}, {s(sKH)}, 14336")
        e(f"s_add_u32 {s(sBB)}, {s(sBB)}, {s(sT+1)}")
        e(f"s_lshl_b32 {s(sSTAT)}, {s(sTB)}, 12")
        e(f"s_lshr_b32 {s(sT+1)}, {s(sNT)}, 2")
        e(f"s_lshl_b32 {s(sT+1)}, {s(sT+1)}, 10")
        e(f"s_add_u32 {s(sSTAT)}, {s(sSTAT)}, {s(sT+1)}")
        e(f"s_add_u32 {s(sSTAT)}, {s(sSTAT)}, {s(sLBS)}")
        e(f"s_and_b32 {s(sT+1)}, {s(sNT)}, 3")
        e(f"s_lshl_b32 {s(sT+1)}, {s(sT+1)}, 2")
        e(f"s_add_u32 {s(sSTAT)}, {s(sSTAT)}, {s(sT+1)}")
        e(f"s_lshl_b32 {s(sT)}, {s(sSET)}, 8")
        e(f"s_add_u32 {s(sXT)}, {s(sT)}, {XTAB}")
        e(f"s_lshl_b32 {s(sT+1)}, {s(sR)}, 2")
        e(f"s_add_u32 {s(sFLG)}, {s(sT)}, {s(sT+1)}")
        e(f"s_mov_b32 {s(sMODE)}, 1")
        e(f"s_lshl_b32 {s(sT+1)}, {s(sHEAD)}, 8")
        e(f"s_add_u32 {s(sT+1)}, {s(sT+1)}, {KVFLAG}")
        e(f"v_and_b32 {v(vT)}, 15, {v(vLANE)}")
        e(f"v_lshl_add_u32 {v(self.KVP)}, {v(vT)}, 2, {s(sT+1)}")
        e(f"s_lshl_b32 {s(sKFL)}, {s(sBLK)}, 2")
        e(f"s_add_u32 {s(sKFL)}, {s(sKFL)}, {s(sT+1)}")
        e(f"s_cmp_eq_u32 {s(sRB4)}, 0")
        e(f"s_cselect_b32 {s(sT+1)}, 7, 1")
        e(f"s_cselect_b32 {s(sT+2)}, 256, 0")
        e(f"s_add_u32 {s(sT+1)}, {s(sT+1)}, {s(sSET)}")
        e(f"s_and_b32 {s(sT+1)}, {s(sT+1)}, 7")
        e(f"s_lshl_b32 {s(sT+1)}, {s(sT+1)}, 9")
        e(f"s_add_u32 {s(sT+1)}, {s(sT+1)}, {s(sT+2)}")
        e(f"s_mov_b32 {s(sT+3)}, {HFLAG}")
        e(f"s_add_u32 {s(sT+1)}, {s(sT+1)}, {s(sT+3)}")
        e(f"v_and_b32 {v(vT+5)}, 31, {v(vLANE)}")
        e(f"v_lshlrev_b32 {v(vT+5)}, 2, {v(vT+5)}")
        e(f"s_cmp_eq_u32 {s(sRB4)}, 1")
        e(f"s_cselect_b32 {s(sT+1)}, {s(sT)}, {s(sT+1)}")
        e(f"s_cmp_eq_u32 {s(sRB4)}, 2")
        e(f"s_cselect_b32 {s(sT+1)}, {s(sT)}, {s(sT+1)}")
        e(f"v_add_u32 {v(vPOLL)}, {s(sT)}, {v(vT+5)}")
        e(f"v_mov_b32 {v(self.P2)}, {v(vPOLL)}")
        e("s_mov_b32 exec_lo, 0")
        e(f"v_add_u32 {v(self.P2)}, {s(sT+1)}, {v(vT+5)}")
        e("s_mov_b32 exec_lo, -1")
        e(f"s_xor_b32 {s(sT+2)}, {s(sT+2)}, 256")
        e(f"s_lshl_b32 {s(sT+1)}, {s(sSET)}, 9")
        e(f"s_add_u32 {s(sT+1)}, {s(sT+1)}, {s(sT+2)}")
        e(f"s_add_u32 {s(sT+1)}, {s(sT+1)}, {s(sT+3)}")
        e(f"s_lshl_b32 {s(sT+2)}, {s(sCS)}, 2")
        e(f"s_add_u32 {s(sHFL)}, {s(sT+1)}, {s(sT+2)}")
        e(f"s_lshl_b32 {s(sT)}, {s(sSET)}, 2")
        e(f"s_add_u32 {s(sT)}, {s(sT)}, {s(sRB4)}")
        e(f"s_mov_b32 {s(sHM)}, 0")
        e(f"s_cmp_eq_u32 {s(sRB4)}, 0")
        e(f"s_cselect_b32 {s(sHM)}, 0x7f, {s(sHM)}")
        e(f"s_cmp_eq_u32 {s(sRB4)}, 3")
        e(f"s_cselect_b32 {s(sHM)}, 0x7f, {s(sHM)}")
        e(f"s_mov_b32 {s(sHP)}, {s(sHM)}")
        e(f"s_cmp_eq_u32 {s(sT)}, 0")
        e(f"s_cselect_b32 {s(sHM)}, 0, {s(sHM)}")
        e(f"s_cmp_eq_u32 {s(sT)}, 31")
        e(f"s_cselect_b32 {s(sHM)}, 0, {s(sHM)}")
        e(f"s_mul_i32 {s(sT)}, {s(sRB4)}, 7")
        e(f"s_mov_b32 {s(sMSK)}, 0x1fffff")
        e(f"s_mov_b32 {s(sMSK+1)}, 0")
        e(f"s_lshl_b64 {s(sMSK,2)}, {s(sMSK,2)}, {s(sT)}")
        e(f"s_lshr_b64 {s(sMSK,2)}, {s(sMSK,2)}, 7")
        e(f"s_and_b32 {s(sM2)}, {s(sMSK)}, 0xfffffff")
        e(f"v_mov_b32 {v(vT)}, {s(sFLG)}")
        e(f"s_add_u32 {s(sT)}, {s(sFLG)}, {XTAB}")
        e(f"v_writelane_b32 {v(vT)}, {s(sT)}, 1")
        e(f"s_cmp_lg_u32 {s(sHP)}, 0")
        e(f"s_cselect_b32 {s(sT)}, {s(sHFL)}, {s(sFLG)}")
        e(f"v_writelane_b32 {v(vT)}, {s(sT)}, 2")
        e(f"v_writelane_b32 {v(vT)}, {s(sKFL)}, 3")
        e(f"v_mov_b32 {v(vT+1)}, 0")
        lab = self.newlabel("clr")
        e(f"s_cmp_lg_u32 {s(sWAVE)}, 0")
        e(f"s_cbranch_scc1 {lab}")
        e("s_mov_b64 exec, 15")
        e(f"buffer_store_dword {v(vT+1)}, {v(vT)}, {s(sWS,4)}, 0 offen sc1")
        e("s_mov_b64 exec, -1")
        self.label(lab)
        e(f"s_lshl_b32 {s(sT)}, s2, 2")
        e(f"s_add_u32 {s(sT)}, {s(sT)}, {s(sWAVE)}")
        for k, (L, N) in enumerate(((4, 3136), (13, 12544)) if 'kvtouch' in self.opt else ((2, 3136), (5, 12544))):
            e(f"s_mul_i32 {s(sT+1)}, {s(sT)}, {L}")
            e(f"v_min_u32 {v(vT)}, {L-1}, {v(vLANE)}")
            e(f"v_add_u32 {v(vT)}, {s(sT+1)}, {v(vT)}")
            if 'kvtouch' not in self.opt: e(f"v_mul_u32_u24 {v(vT)}, 3, {v(vT)}")
            e(f"v_min_u32 {v(vT)}, {N-12}, {v(vT)}")
            e(f"v_lshlrev_b32 {v(self.TW+k)}, 7, {v(vT)}")
        self.lane_g8(vG8, 896)
        self.lane_g8(self.G3, 3584)
        e(f"s_lshl_b32 {s(sT)}, {s(sWAVE)}, 12")
        e(f"s_add_u32 {s(sT)}, {s(sT)}, {XCH}")
        e(f"v_add_u32 {v(vXW)}, {s(sT)}, {v(vL16)}")
        e(f"v_xor_b32 {v(vXR)}, 0x2000, {v(vXW)}")
        for i in range(1, 4):
            e(f"s_add_u32 {s(sT)}, {s(sWAVE)}, {i}")
            e(f"s_and_b32 {s(sT)}, {s(sT)}, 3")
            e(f"s_mul_i32 {s(sT)}, {s(sT)}, 12288")
            e(f"s_add_u32 {s(sT)}, {s(sT)}, {MISC + (i-1)*4096}")
            e(f"v_add_u32 {v(self.CW+i-1)}, {s(sT)}, {v(vL16)}")
        e(f"s_mul_i32 {s(sT)}, {s(sWAVE)}, 12288")
        e(f"s_add_u32 {s(sT)}, {s(sT)}, {MISC}")
        e(f"v_add_u32 {v(self.CW+3)}, {s(sT)}, {v(vL16)}")
        e(f"s_mul_i32 {s(sT+2)}, {s(sTB3)}, {SLOT}")
        e(f"s_add_u32 {s(sT+2)}, {s(sT+2)}, {s(sLB)}")
        if OF: e(f"s_add_u32 {s(sT+2)}, {s(sT+2)}, {OF}")
        e(f"s_mul_i32 {s(sT)}, {s(sHEAD)}, 7")
        e(f"v_lshrrev_b32 {v(vT+1)}, 5, {v(vLANE)}")
        e(f"v_add_u32 {v(vT+1)}, {s(sT)}, {v(vT+1)}")
        e(f"v_and_b32 {v(vT+2)}, 31, {v(vLANE)}")
        e(f"v_lshl_add_u32 {v(vT+2)}, {v(vT+2)}, 4, {s(sT+2)}")
        e(f"v_and_b32 {v(vT+3)}, 1, {v(vT+1)}")
        e(f"v_lshl_add_u32 {v(vT+2)}, {v(vT+3)}, 9, {v(vT+2)}")
        for q in range(4):
            e(f"v_add_u32 {v(vT+3)}, {2*q}, {v(vT+1)}")
            e(f"v_lshrrev_b32 {v(vT+4)}, 2, {v(vT+3)}")
            e(f"v_lshl_add_u32 {v(vOST+q)}, {v(vT+4)}, 10, {v(vT+2)}")
            e(f"v_bfe_u32 {v(vT+4)}, {v(vT+3)}, 1, 1")
            e(f"v_lshl_add_u32 {v(vOST+q)}, {v(vT+4)}, 3, {v(vOST+q)}")
        e(f"s_mul_i32 {s(sT)}, {s(sSET)}, {SETSZ}")
        e(f"s_add_u32 {s(sT)}, {s(sT)}, {LB0}")
        e(f"s_lshl_b32 {s(sT+1)}, {s(sR)}, 2")
        e(f"s_add_u32 {s(sT+1)}, {s(sT+1)}, {s(sWAVE)}")
        e(f"s_mul_i32 {s(sT+1)}, {s(sT+1)}, {(2*U+32768)//128}")
        e(f"s_add_u32 {s(sT)}, {s(sT)}, {s(sT+1)}")
        e(f"v_min_u32 {v(vT+3)}, 29, {v(vLANE)}")
        e(f"v_lshl_add_u32 {v(vTCO)}, {v(vT+3)}, 7, {s(sT)}")
        vB = [self.HB, self.HB + 1]
        e(f"s_mul_i32 {s(sT+3)}, {s(sKH)}, 14336")
        e(f"s_add_u32 {s(sT+3)}, {s(sT+3)}, {s(sLB)}")
        e(f"s_add_u32 {s(sT+3)}, {s(sT+3)}, {HF}")
        e(f"s_lshl_b32 {s(sT+2)}, {s(sTB)}, 5")
        e(f"s_add_u32 {s(sT+4)}, {s(sKH)}, 1")
        e(f"s_mov_b32 {s(sT+5)}, {SLOT}")
        for d in range(2):
            e(f"v_and_b32 {v(vT)}, 31, {v(vLANE)}")
            e(f"v_add_u32 {v(vT)}, {s(sT+2)}, {v(vT)}")
            e(f"v_{'subrev' if d == 0 else 'add'}_u32 {v(vT)}, {s(sT+4)}, {v(vT)}")
            e(f"v_lshrrev_b32 {v(vT+1)}, 5, {v(vT)}")
            e(f"v_mul_lo_u32 {v(vB[d])}, {v(vT+1)}, {s(sT+5)}")
            e(f"v_and_b32 {v(vT+1)}, 31, {v(vT)}")
            e(f"v_lshl_add_u32 {v(vB[d])}, {v(vT+1)}, 4, {v(vB[d])}")
            e(f"v_and_b32 {v(vT+1)}, 512, {v(vL16)}")
            e(f"v_add3_u32 {v(vB[d])}, {v(vB[d])}, {v(vT+1)}, {s(sT+3)}")
            e(f"v_lshrrev_b32 {v(vT+1)}, 8, {v(vT)}")
            e(f"v_cmp_ne_u32 vcc, {s(sSET)}, {v(vT+1)}")
            e(f"v_add_u32 {v(vT+1)}, {s(sHD)}, {v(vB[d])}")
            self.nop(1)
            e(f"v_cndmask_b32 {v(vB[d])}, {v(vB[d])}, {v(vT+1)}, vcc")
            e(f"v_cmp_lt_u32 vcc, 0x7ff, {v(vT)}")
            e(f"v_bfrev_b32 {v(vT+1)}, 1")
            self.nop(1)
            e(f"v_cndmask_b32 {v(vB[d])}, {v(vB[d])}, {v(vT+1)}, vcc")

    def idle_warm(self):
        e = self.e
        e(f"s_sub_u32 {s(sT+2)}, {s(sR)}, 28")
        e(f"s_lshl_b32 {s(sT+2)}, {s(sT+2)}, 2")
        e(f"s_add_u32 {s(sT+2)}, {s(sT+2)}, {s(sWAVE)}")
        def w3():
            self.srd(sW, sPW3, 448 * 3584)
            e(f"v_lshlrev_b32 {v(vT)}, 8, {v(vLANE)}")
            for par in range(2):
                e(f"s_lshl_b32 {s(sT+3)}, {s(sT+2)}, 14")
                for j in range(7):
                    e(f"buffer_load_dword {v(vDUM)}, {v(vT)}, {s(sW,4)}, {s(sT+3)} offen offset:{128*par}")
                    if j < 6: e(f"s_add_u32 {s(sT+3)}, {s(sT+3)}, {16*16384}")
        def hh():
            e(f"v_lshlrev_b32 {v(vT)}, 7, {v(vLANE)}")
            e(f"s_mul_i32 {s(sT+3)}, {s(sSET)}, {SETSZ}")
            e(f"s_mul_i32 {s(sT+4)}, {s(sT+2)}, {4*U//16}")
            e(f"s_add_u32 {s(sT+3)}, {s(sT+3)}, {s(sT+4)}")
            e(f"s_add_u32 {s(sT+3)}, {s(sT+3)}, {LB0 + HH}")
            for j in range(7):
                e(f"buffer_load_dword {v(vDUM)}, {v(vT)}, {s(sWS,4)}, {s(sT+3)} offen sc1")
                e(f"s_add_u32 {s(sT+3)}, {s(sT+3)}, 8192")
        if 'idleA' not in self.opt and 'idleC' not in self.opt:
            w3(); hh()
        elif 'idleC' in self.opt:
            hh(); w3()
        else:
            l1, l2 = self.newlabel("iw"), self.newlabel("iw")
            e(f"s_cmp_lg_u32 {s(sLAYER)}, 0")
            e(f"s_cbranch_scc1 {l1}")
            hh()
            e(f"s_branch {l2}")
            self.label(l1)
            w3()
            self.label(l2)
        self.srd(sW, sPW4, 1792 * 896)
        e(f"v_min_u32 {v(vT)}, 48, {v(vLANE)}")
        e(f"v_lshlrev_b32 {v(vT)}, 7, {v(vT)}")
        e(f"s_lshr_b32 {s(sT+3)}, {s(sT+2)}, 3")
        e(f"s_mul_i32 {s(sT+3)}, {s(sT+3)}, {896*896}")
        e(f"s_and_b32 {s(sT+4)}, {s(sT+2)}, 7")
        e(f"s_mul_i32 {s(sT+4)}, {s(sT+4)}, {98*128}")
        e(f"s_add_u32 {s(sT+3)}, {s(sT+3)}, {s(sT+4)}")
        for c in range(8):
            e(f"buffer_load_dword {v(vDUM)}, {v(vT)}, {s(sW,4)}, {s(sT+3)} offen")
            e(f"s_add_u32 {s(sT+3)}, {s(sT+3)}, {49*128}")
            e(f"buffer_load_dword {v(vDUM)}, {v(vT)}, {s(sW,4)}, {s(sT+3)} offen")
            e(f"s_add_u32 {s(sT+3)}, {s(sT+3)}, {112*896 - 49*128}")
        self.stamp('idle_w')

    CW, G3, P2, HB, KVP, ZO, TW, XO = 204, 240, 241, 242, 244, 245, 246, 100
    def kernel(self):
        e = self.e
        self.outofline = []
        self.begin(NAME + "_kernel")
        self.setup("L_done")
        e(f"s_mov_b32 {s(sLAYER)}, 0")
        if 'dbgclk' in self.opt:
            e(f"s_memtime s[{sT}:{sT+1}]"); e(f"s_memrealtime s[{sT+2}:{sT+3}]"); e("s_waitcnt lgkmcnt(0)")
            e(f"v_mov_b32 {v(vT)}, {s(sT)}"); e(f"v_accvgpr_write_b32 a250, {v(vT)}")
            e(f"v_mov_b32 {v(vT)}, {s(sT+2)}"); e(f"v_accvgpr_write_b32 a251, {v(vT)}")
        if 'nocodetouch' not in self.opt:
            e(f"s_getpc_b64 {s(sT,2)}")
            self.label("L_pc0")
            e(f"s_lshl_b32 {s(sT+2)}, {s(sR)}, 2")
            e(f"s_add_u32 {s(sT+2)}, {s(sT+2)}, {s(sWAVE)}")
            e(f"v_and_b32 {v(vT)}, 3, {v(vLANE)}")
            e(f"v_lshl_add_u32 {v(vT)}, {s(sT+2)}, 2, {v(vT)}")
            e(f"v_lshlrev_b32 {v(vT)}, 7, {v(vT)}")
            e(f"v_min_u32 {v(vT)}, L_code_end-L_pc0-4, {v(vT)}")
            e(f"global_load_dword {v(vDUM)}, {v(vT)}, {s(sT,2)}")
        self.qkv0_issue()
        self.stamp('q0_iss')
        e(f"v_mov_b32 v53, {v(vT+2)}")
        self.roles()
        self.stamp('q0_roles')
        e(f"v_mov_b32 {v(vT+2)}, v53")
        if 'q0notouch' not in self.opt: self.emit_items(self.qkv0_group(0))
        self.emit_items(self.qkv0_group(1))
        self.epoch_publish()
        self.qkv0()
        self.label("L_kv")
        self.kv_out()
        self.attention()
        idle = "L_idle"
        e(f"s_cmp_ge_u32 {s(sR)}, 28")
        e(f"s_cbranch_scc1 {idle}")
        for k in ('wo', 'w1', 'w2'): self.small(k)
        self.w3()
        self.w4()
        self.label(idle)
        if 'nowarm' not in self.opt: self.idle_warm()
        e(f"s_cmp_lg_u32 {s(sLAYER)}, 0")
        e(f"s_cbranch_scc1 L_end")
        self.wimg_bases()
        e(f"s_mov_b32 {s(sMSK)}, 0xfffffff")
        e(f"s_mov_b32 {s(sMSK+1)}, 0")
        self.poll(4)
        e(f"s_sub_u32 {s(sT+2)}, {s(sR)}, 28")
        e(f"s_lshl_b32 {s(sT+2)}, {s(sT+2)}, 2")
        e(f"s_add_u32 {s(sT+2)}, {s(sT+2)}, {s(sWAVE)}")
        e(f"s_mul_i32 {s(sT+2)}, {s(sT+2)}, {WIMG_S}")
        e(f"s_add_u32 {s(sT+2)}, {s(sT+2)}, {WIMG}")
        e(f"v_lshlrev_b32 {v(vT)}, 7, {v(vLANE)}")
        for i in range(11):
            self.vmem(f"buffer_load_dword {v(vDUM)}, {v(vT)}, {s(sWS,4)}, {s(sT+2)} offen sc1", "tch")
            e(f"s_add_u32 {s(sT+2)}, {s(sT+2)}, 8192")
        self.emit_items(self.dma_wimg(0, S4) + self.dma_wimg(1, S0) + self.dma_wimg(2, S1) + self.dma_wimg_cs())
        self.vm = []
        self.label("L_qkv")
        self.qkv1()
        if self.stop == 'l0': e("s_branch L_done")
        e("s_branch L_kv")
        self.label("L_end")
        if 'dbgclk' in self.opt:
            e(f"s_memtime s[{sT}:{sT+1}]"); e(f"s_memrealtime s[{sT+2}:{sT+3}]"); e("s_waitcnt lgkmcnt(0)")
            e(f"v_accvgpr_read_b32 v6, a250"); e(f"v_accvgpr_read_b32 v7, a251")
            e(f"v_sub_u32 v6, {s(sT)}, v6"); e(f"v_sub_u32 v7, {s(sT+2)}, v7")
            e(f"s_lshr_b32 {s(sT)}, s2, 5"); e(f"s_lshl_b32 {s(sT)}, {s(sT)}, 3"); e(f"s_add_u32 {s(sT)}, {s(sT)}, 8")
            e(f"v_mov_b32 v5, {s(sT)}")
            e(f"s_and_b32 {s(sT)}, s2, 31"); e(f"s_add_u32 {s(sT)}, {s(sT)}, {s(sWAVE)}")
            e(f"s_cmp_lg_u32 {s(sT)}, 0"); e("s_cbranch_scc1 L_done")
            e(f"s_cmp_ge_u32 s2, 224"); e("s_cbranch_scc1 L_done")
            e("s_mov_b64 exec, 1")
            e(f"global_store_dwordx2 v5, v[6:7], {s(sPDBG,2)}")
        self.dump_stamps()
        self.label("L_done")
        e("s_endpgm")
        while self.outofline: self.outofline.pop(0)()
        self.flush_tails()
        self.label("L_code_end")

sZH, sZX = sOW4, sOIM
TSZ = SETSZ if DEBUG_LAYOUT else 2 * U + 32768
TLINES = -(-TSZ // (128 * 128 * 12))
sTILE, sSTAT, sBB, sHX, sM2, sHP = 95, 96, 97, 98, 99, 100

def build(stamps=False, stop=None, force_slow=False, opt=()):
    g = Gen2(stamps, stop, force_slow, opt)
    g.tails = []
    hdr = open('cdna_kernels/' + NAME + '.s.ref').read().split('\n')
    hdr = [l for l in hdr if l.startswith(';   ') or l.startswith('; Kernarg')]
    hdr = [l for l in hdr if 'launch' not in l]
    out = "\n".join(hdr) + "\n"
    out += f"; @launch grid=(256,1,1) block=(256,1,1) lds={LDS_BYTES}\n"
    out += '.amdgcn_target "amdgcn-amd-amdhsa--gfx950"\n.text\n'
    g.kernel()
    out += g.text()
    if stamps: out += "; STAMPS " + ",".join(g.stnames) + "\n"
    out += '.section .rodata,"a"\n'
    out += ".p2align 6\n" + descriptor(NAME + "_kernel")
    return out

if __name__ == '__main__':
    import argparse, lint
    ap = argparse.ArgumentParser()
    ap.add_argument('-o', default='cdna_kernels/' + NAME + '.s')
    ap.add_argument('--stamps', action='store_true')
    ap.add_argument('--slow', action='store_true')
    ap.add_argument('--stop')
    ap.add_argument('--opt', default='')
    a_ = ap.parse_args()
    txt = build(a_.stamps, a_.stop, a_.slow, a_.opt.split(','))
    open(a_.o, 'w').write(txt)
    errs = lint.lint(txt)
    for x in errs: print(x)
    print(len(errs), "hazards;", txt.count('\n'), "lines")
```

```python
import sys, re
from g import *

class Gen2(Gen):
    tails = []
    ACC3 = [176, 208, 224]
    vS, vR, vNM, vRQ, vCV = 32, 46, 47, 48, 50
    CSQ, CSK, TR, TN = 64, 80, 96, 112
    PQ, PK, PV = 128, 136, 144
    def qkv_common_addr(self):
        e = self.e
        e(f"s_lshl_b32 {s(sT)}, {s(sWAVE)}, 8")
        e(f"s_add_u32 {s(sT)}, {s(sT)}, {TRB}")
        e(f"v_lshl_add_u32 {v(vT+4)}, {v(vLANE)}, 2, {s(sT)}")
        e(f"s_sub_u32 {s(sT)}, {s(sT)}, {CSB}")
        e(f"v_add_u32 {v(vT+5)}, {s(sT)}, {v(vCSA)}")
        e(f"v_and_b32 {v(vT+3)}, 31, {v(vLANE)}")
        e(f"v_lshlrev_b32 {v(vT+3)}, 2, {v(vT+3)}")
        e(f"v_add_u32 {v(vT+3)}, {CSB+256}, {v(vT+3)}")
    def qkv_lists(self):
        vS, vR, vNM, vRQ, vCV = self.vS, self.vR, self.vNM, self.vRQ, self.vCV
        fin = self.stats_finish(vS, vS + 1) + [
            f"v_add_f32 {v(vS+1)}, {fx(EPS)}, {v(vS+1)}", f"v_rsq_f32 {v(vR)}, {v(vS+1)}",
            f"v_sub_f32 {v(vNM)}, 0, {v(vMEAN)}", f"v_cmp_gt_u32 vcc, 32, {v(vLANE)}",
            f"v_mul_f32 {v(vRQ)}, {fx(QSCALE)}, {v(vR)}", f"v_mul_f32 {v(vRQ+1)}, {v(vNM)}, {v(vR)}",
            f"v_cndmask_b32 {v(vRQ+1)}, {v(vRQ+1)}, {v(vR)}, vcc",
            (f"ds_write_b32 {v(vT+4)}, {v(vRQ+1)}", "lds:trw")]
        trreads = [(f"ds_read_b128 {v(self.TR+4*q,4)}, {v(vT+5)} offset:{32*q}", "lds:cs") for q in range(4)] + \
                  [(f"ds_read_b128 {v(self.TN+4*q,4)}, {v(vT+5)} offset:{128+32*q}", "lds:cs") for q in range(4)]
        csreads = self.cs_reads(self.CSQ, 0) + self.cs_reads(self.CSK, 128) + [(f"ds_read_b32 {v(vCV)}, {v(vT+3)}", "lds:cs")]
        return fin, trreads, csreads

    def qkv0_issue(self):
        e = self.e
        self.srd(sX, sPX, 2048 * 896)
        self.srd(sW, sPQKV, 448 * 2688)
        lab = self.newlabel("ep0")
        e(f"s_lshl_b32 {s(sT+1)}, s2, 2")
        e(f"s_add_u32 {s(sT+1)}, {s(sT+1)}, {s(sWAVE)}")
        e(f"s_mov_b32 {s(sT+2)}, {EPOCH}")
        e(f"s_cmp_lg_u32 {s(sT+1)}, 3")
        e(f"s_cbranch_scc1 {lab}")
        e(f"buffer_load_dword {v(vPF)}, off, {s(sWS,4)}, {s(sT+2)} sc1")
        self.label(lab)
        e(f"v_lshlrev_b32 {v(vT)}, 7, {v(vLANE)}")
        e(f"s_lshl_b32 {s(sT+1)}, {s(sR)}, 2")
        e(f"s_add_u32 {s(sT+1)}, {s(sT+1)}, {s(sWAVE)}")
        e(f"s_mul_i32 {s(sT+2)}, {s(sT+1)}, {74*128}")
        e(f"s_mul_i32 {s(sT+3)}, {s(sT+1)}, {14*128}")
        e(f"s_mul_i32 {s(sT+4)}, {s(sSET)}, {U}")
        e(f"s_add_u32 {s(sT+3)}, {s(sT+3)}, {s(sT+4)}")
        if 'q0notouch' in self.opt: e(f"v_bfrev_b32 {v(vT)}, 1")
        e("s_mov_b64 exec, 0x3fff")
        self.vmem(f"buffer_load_dword {v(vDUM)}, {v(vT)}, {s(sX,4)}, {s(sT+3)} offen", "tch")
        e("s_mov_b64 exec, -1")
        self.vmem(f"buffer_load_dword {v(vDUM)}, {v(vT)}, {s(sW,4)}, {s(sT+2)} offen", "tch")
        e(f"s_add_u32 {s(sT+2)}, {s(sT+2)}, 8192")
        e("s_mov_b64 exec, 0x3ff")
        self.vmem(f"buffer_load_dword {v(vDUM)}, {v(vT)}, {s(sW,4)}, {s(sT+2)} offen", "tch")
        e("s_mov_b64 exec, -1")
        XD, XR_ = 96, 100
        e(f"v_lshrrev_b32 {v(vT)}, 3, {v(vLANE)}")
        e(f"v_mul_u32_u24 {v(vT+1)}, 896, {v(vT)}")
        e(f"v_lshrrev_b32 {v(vT)}, 4, {v(vLANE)}")
        e(f"v_xor_b32 {v(vT)}, {v(vT)}, {v(vLANE)}")
        e(f"v_and_b32 {v(vT)}, 7, {v(vT)}")
        e(f"v_lshl_add_u32 {v(XD)}, {v(vT)}, 4, {v(vT+1)}")
        e(f"v_xor_b32 {v(vT)}, 4, {v(vT)}")
        e(f"v_lshl_add_u32 {v(XD+1)}, {v(vT)}, 4, {v(vT+1)}")
        e(f"v_add_u32 {v(XD+2)}, {2*6144}, {v(XD)}")
        e(f"v_add_u32 {v(XD+3)}, {3*6144}, {v(XD+1)}")
        e(f"v_add_u32 {v(XD+1)}, {6144}, {v(XD+1)}")
        self.lane_t32(vT + 2, 2688)
        e(f"s_mul_i32 {s(sOW4)}, {s(sWAVE)}, {16*2688}")
        e(f"s_mul_i32 {s(sT+1)}, {s(sHEAD)}, 56")
        e(f"s_add_u32 {s(sOW4)}, {s(sOW4)}, {s(sT+1)}")
        e(f"s_lshl_b32 {s(sOL4)}, {s(sWAVE)}, 10")
        e(f"s_mul_i32 {s(sOIM)}, {s(sTB3)}, {32*896}")
        e(f"s_lshl_b32 {s(sOIL)}, {s(sWAVE)}, 14")
        e(f"s_add_u32 {s(sOIL)}, {s(sOIL)}, {S3}")
        self.stamp('q0_tch')
        if 'q0notouch' in self.opt: self.emit_items(self.qkv0_group(0))
    def epoch_publish(self):
        e = self.e
        lab = self.newlabel("ep1")
        e(f"s_lshl_b32 {s(sT+1)}, s2, 2")
        e(f"s_add_u32 {s(sT+1)}, {s(sT+1)}, {s(sWAVE)}")
        e(f"s_cmp_lg_u32 {s(sT+1)}, 3")
        e(f"s_cbranch_scc1 {lab}")
        e(f"s_waitcnt vmcnt({len(self.vm)})")
        e(f"v_readfirstlane_b32 {s(sT+1)}, {v(vPF)}")
        e(f"s_mov_b32 {s(sT+2)}, {EPOCH}")
        self.nop(2)
        e(f"s_add_u32 {s(sT+1)}, {s(sT+1)}, 64")
        e(f"s_sub_u32 {s(sT+3)}, {s(sT+1)}, 1")
        e(f"s_cmp_ge_u32 {s(sT+3)}, 0xffffff00")
        e(f"s_cselect_b32 {s(sT+1)}, 64, {s(sT+1)}")
        e(f"v_mov_b32 {v(vT)}, {s(sT+1)}")
        e(f"v_mov_b32 {v(vT+1)}, 0")
        e("s_mov_b64 exec, 1")
        e(f"global_store_dword {v(vT+1)}, {v(vT)}, {s(sPDBG,2)} sc1")
        e(f"buffer_store_dword {v(vT)}, off, {s(sWS,4)}, {s(sT+2)} sc1")
        e("s_mov_b64 exec, -1")
        self.label(lab)
    def qkv0_group(self, g):
        XD = 96
        items = []
        for i in range(4):
            it = []
            if i == 0: it += [(f"s_add_u32 m0, {s(sOIL)}, {(g%4)*4096}", None), (f"s_add_u32 {s(sDS)}, {s(sOIM)}, {128*g}", None)]
            it.append((f"buffer_load_dwordx4 {v(XD+i)}, {s(sX,4)}, {s(sDS)} offen offset:{1024*i} lds", f"g{g}"))
            items.append(it)
        for t in range(3):
            items.append([(f"s_add_u32 m0, {s(sOL4)}, {t*SLOT + g*4096}", None),
                          (f"s_add_u32 {s(sDS)}, {s(sOW4)}, {g*64*2688 + t*896}", None),
                          (f"buffer_load_dwordx4 {v(vT+2)}, {s(sW,4)}, {s(sDS)} offen lds", f"g{g}")])
        return items

    def qkv0(self):
        e = self.e
        ACC, vS = self.ACC3, self.vS
        AF, ONE, CSA = A(128), A(176), A(180)
        XR_, BB = 100, 64
        vAD = [vA0, vA1, vT + 6, 52]
        vW = 53
        e(f"v_and_b32 {v(vT)}, 31, {v(vLANE)}")
        e(f"v_lshrrev_b32 {v(vT+1)}, 1, {v(vT)}")
        e(f"v_lshrrev_b32 {v(vT+3)}, 5, {v(vLANE)}")
        e(f"v_xor_b32 {v(vT+1)}, {v(vT+1)}, {v(vT+3)}")
        e(f"v_and_b32 {v(vT+1)}, 7, {v(vT+1)}")
        e(f"v_lshl_add_u32 {v(vT)}, {v(vT)}, 7, {s(sOIL)}")
        for u in range(4):
            e(f"v_xor_b32 {v(vT+4)}, {2*u}, {v(vT+1)}")
            e(f"v_lshl_add_u32 {v(XR_+u)}, {v(vT+4)}, 4, {v(vT)}")
        e(f"v_lshl_add_u32 {v(vAD[0])}, {v(vT+3)}, 8, {v(vTR)}")
        e(f"v_add_u32 {v(vAD[1])}, {S1}, {v(vAD[0])}")
        e(f"v_add_u32 {v(vAD[2])}, {S2}, {v(vAD[0])}")
        e(f"s_mul_i32 {s(sT)}, {s(sWAVE)}, {SLOT}")
        e(f"s_cmp_eq_u32 {s(sWAVE)}, 3")
        e(f"s_cselect_b32 {s(sT)}, 0, {s(sT)}")
        e(f"v_add_u32 {v(vAD[3])}, {s(sT)}, {v(vAD[0])}")
        self.ones(ONE)
        e(f"v_mov_b32 {v(vS+4)}, 0x3f803f80")
        for i in range(4): e(f"v_mov_b32 {v(vS+i)}, 0")
        def aread(q):
            out = []
            for t in range(4): out += self.tr2(AF.at(16 * (q % 3) + 4 * t), vAD[t], q * 1024, 256, f"a{q}")
            return out
        def breads(c):
            return [(f"ds_read_b128 {v(BB+16*(c&1)+4*u,4)}, {v(XR_+u)} offset:{(c%4)*4096}", f"lds:x{c}") for u in range(4)]
        self.wait(vm="g0")
        e("s_barrier")
        self.stamp('q0_g0')
        for x in breads(0) + aread(0): self.emit1(x)
        for c in range(7):
            if c in (2, 4, 6): self.stamp(f'q0_g{c}')
            Bc = BB + 16 * (c & 1)
            items = self.qkv0_group(c + 2) if c + 2 < 7 else []
            if c == 4:
                items.append([(f"v_mov_b32 {v(vT)}, 0", None), (f"global_load_dword {v(vPF)}, {v(vT)}, {s(sPDBG,2)} sc1", "non")])
            self.wait(lg=f"x{c}")
            if c == 0:
                for x in aread(1): self.emit1(x)
            for r in range(16):
                e(f"v_dot2c_f32_bf16 {v(vS+(r&1))}, {v(Bc+r)}, {v(vS+4)}")
                e(f"v_dot2c_f32_bf16 {v(vS+2+(r&1))}, {v(Bc+r)}, {v(Bc+r)}")
            for u in range(4):
                q = 4 * c + u
                if u == 2 and c < 6:
                    self.wait(vm=f"g{c+1}")
                    e("s_barrier")
                self.wait(lg=f"a{q}")
                nxt = aread(q + 2) if q + 2 < 28 else []
                bn = breads(c + 1) if (u == 2 and c < 6) else []
                for t in range(4):
                    af = AF(16 * (q % 3) + 4 * t, 4)
                    if t < 2: self.mfma(v(ACC[t], 16), af, v(Bc + 4 * u, 4), "0" if q == 0 else v(ACC[t], 16))
                    elif t == 2: self.mfma(v(ACC[t], 16), v(Bc + 4 * u, 4), af, "0" if q == 0 else v(ACC[t], 16))
                    else: self.mfma(CSA(0, 16), af, ONE(0, 4), "0" if q == 0 else CSA(0, 16))
                    for x in nxt[2 * t:2 * t + 2]: self.emit1(x)
                    if bn: self.emit1(bn.pop(0))
                    if t in (1, 3) and items: self.emit_item(items.pop(0))
                if c == 5 and u == 3: self.qkv_common_addr()
            assert not items
        self.stamp('qkv_kloop')
        fin, trreads, csreads = self.qkv_lists()
        e(f"v_add_f32 {v(vS)}, {v(vS)}, {v(vS+1)}")
        e(f"v_add_f32 {v(vS+1)}, {v(vS+2)}, {v(vS+3)}")
        self.nop(2)
        e(f"v_permlane32_swap_b32 {v(vS)}, {v(vS+1)}")
        e(f"v_add_f32 {v(vS)}, {v(vS)}, {v(vS+1)}")
        for x in fin: self.emit1(x)
        self.cs_write(CSA, 0)
        for x in trreads: self.emit1(x)
        self.wait(lg="csw")
        e("s_barrier")
        for x in csreads[4:] + csreads[:4]: self.emit1(x)
        self.wait(vm="non")
        e(f"v_readfirstlane_b32 {s(sPH)}, {v(vPF)}")
        self.nop(2)
        e(f"s_cmp_eq_u32 {s(sPH)}, 0")
        e(f"s_cbranch_scc1 L_epoch_wait")
        self.label("L_epoch_ok")
        def epwait():
            self.label("L_epoch_wait")
            e(f"s_mov_b32 {s(sSPIN)}, 0")
            e(f"v_mov_b32 {v(vT)}, 0")
            l2 = self.newlabel("epw")
            self.label(l2)
            e(f"global_load_dword {v(vPF)}, {v(vT)}, {s(sPDBG,2)} sc1")
            e(f"s_add_u32 {s(sSPIN)}, {s(sSPIN)}, 1")
            e(f"s_cmp_ge_u32 {s(sSPIN)}, {SPIN_MAX}")
            e("s_waitcnt vmcnt(0)")
            e(f"s_cbranch_scc1 L_epoch_ok")
            e(f"v_readfirstlane_b32 {s(sPH)}, {v(vPF)}")
            self.nop(2)
            e(f"s_cmp_eq_u32 {s(sPH)}, 0")
            e(f"s_cbranch_scc1 {l2}")
            e("s_branch L_epoch_ok")
        self.outofline.append(epwait)
        self.wait(lg=0)
        self.vm = []; self.lg = []

    def image_out(self):
        e = self.e
        IM = 52
        e(f"s_mul_i32 {s(sT+2)}, {s(sBLK)}, 5376")
        e(f"s_lshl_b32 {s(sT+1)}, {s(sWAVE)}, 10")
        e(f"s_add_u32 {s(sT+2)}, {s(sT+2)}, {s(sT+1)}")
        e(f"v_add_u32 {v(vT+1)}, {s(sT+2)}, {v(vL16)}")
        e(f"v_add_u32 {v(vT+2)}, {CSB}, {v(vL16)}")
        self.lds(f"ds_read_b128 {v(IM,4)}, {v(vT+1)}", "im")
        self.lds(f"ds_read_b128 {v(IM+4,4)}, {v(vT+1)} offset:4096", "im")
        self.lds(f"ds_read_b128 {v(IM+8,4)}, {v(vT+2)}", "im")
        e(f"s_mul_i32 {s(sT+1)}, {s(sHEAD)}, {WIMG_S}")
        e(f"s_add_u32 {s(sT+1)}, {s(sT+1)}, {WIMG}")
        e(f"s_add_u32 {s(sT+2)}, {s(sT+1)}, 4096")
        e(f"s_lshl_b32 {s(sT+4)}, {s(sWAVE)}, 6")
        e(f"v_add_u32 {v(vT)}, {s(sT+4)}, {v(vLANE)}")
        e(f"v_cmp_gt_u32 vcc, 80, {v(vT)}")
        e(f"v_bfrev_b32 {v(vT+3)}, 1")
        e(f"s_add_u32 {s(sT+3)}, {s(sT+1)}, {3*SLOT}")
        e(f"v_cndmask_b32 {v(vT+3)}, {v(vT+3)}, {v(vT+1)}, vcc")
        self.wait(lg=0)
        self.vmem(f"buffer_store_dwordx4 {v(IM,4)}, {v(vT+1)}, {s(sWS,4)}, {s(sT+1)} offen sc1", "o")
        self.vmem(f"buffer_store_dwordx4 {v(IM+4,4)}, {v(vT+3)}, {s(sWS,4)}, {s(sT+2)} offen sc1", "o")
        e("s_mov_b64 exec, 0xffffff")
        self.vmem(f"buffer_store_dwordx4 {v(IM+8,4)}, {v(vL16)}, {s(sWS,4)}, {s(sT+3)} offen sc1", "o")
        e("s_mov_b64 exec, -1")

    def qkv1(self):
        e = self.e
        B, AF, ACC, vS = A(0), A(128), self.ACC3, self.vS
        slots = [S4, S0, S1]
        vAD = [vA0, vA1, vT + 6]
        for t in range(3): e(f"v_add_u32 {v(vAD[t])}, {slots[t]}, {v(vTR)}")
        self.qkv_common_addr()
        fin, trreads, csreads = self.qkv_lists()
        def aread(q):
            out = []
            for t in range(3): out += self.tr2(AF.at(12 * (q % 3) + 4 * t), vAD[t], q * 1024, 512, f"a{q}")
            return out
        self.stats_base(sT + 2, STF, sTB3)
        e(f"s_mul_i32 {s(sT)}, {s(sTB3)}, {SLOT}")
        e(f"s_add_u32 {s(sT)}, {s(sT)}, {s(sLB)}")
        e(f"s_add_u32 {s(sT)}, {s(sT)}, {XF}")
        e(f"v_add_u32 {v(vT+2)}, {s(sT)}, {v(vL16)}")
        e(f"s_lshr_b32 {s(sT+1)}, {s(sR)}, 4")
        self.setmask(0x3fff, sT + 1, 14)
        self.poll(6)
        self.stamp('qkv_poll')
        bl = [(f"buffer_load_dwordx4 {B(4*q,4)}, {v(vT+2)}, {s(sWS,4)}, {self.c4(q//4)} offen offset:{1024*(q%4)} sc1", f"b{q}") for q in range(28)]
        st = self.stats_loads(vS, sT + 2)
        rest = self.burst(bl[:2] + st + bl[2:], [2, 4])
        for q in range(2):
            for x in aread(q): self.emit1(x)
        e("s_barrier")
        for _ in range(4): self.emit1(rest.pop(0))
        sf = self.stats_sum(vS) + fin
        fill = {4 + i: sf[5 * i:5 * i + 5] for i in range((len(sf) + 4) // 5)}
        fill[12] = trreads[:4]; fill[14] = trreads[4:]
        fill[16] = csreads[:4]; fill[18] = csreads[4:]
        for q in range(28):
            self.wait(vm=[f"b{q}", "st"] if q == 4 else f"b{q}", lg=f"a{q}")
            nxt = aread(q + 2) if q + 2 < 28 else []
            fl = list(fill.get(q, []))
            for t in range(3):
                af = AF(12 * (q % 3) + 4 * t, 4)
                cc = "0" if q == 0 else v(ACC[t], 16)
                if t < 2: self.mfma(v(ACC[t], 16), af, B(4 * q, 4), cc)
                else: self.mfma(v(ACC[t], 16), B(4 * q, 4), af, cc)
                for x in nxt[2 * t:2 * t + 2]: self.emit1(x)
                if t == 0 and rest: self.emit1(rest.pop(0))
                if t == 1 and rest and q < 6: self.emit1(rest.pop(0))
                for x in fl[2 * t:2 * t + 2]: self.emit1(x)
        self.stamp('qkv_kloop')
        self.dump_stamps()
        e(f"s_mov_b32 {s(sLAYER)}, 1")
        e(f"s_add_u32 {s(sPH)}, {s(sPH)}, 8")
        e(f"v_bfrev_b32 {v(vTCH)}, 1")
        self.nop(6)
        self.wait(lg=0)
        self.vm = []

    def kv_out(self):
        e = self.e
        ACC, vR, vNM, vRQ, vCV = self.ACC3, self.vR, self.vNM, self.vRQ, self.vCV
        PQ, PK, PV = self.PQ, self.PK, self.PV
        e(f"s_lshl_b32 {s(sKVB)}, {s(sHEAD)}, 18")
        e(f"s_mul_i32 {s(sT+1)}, {s(sLAYER)}, {KVF_L}")
        e(f"s_add_u32 {s(sKVB)}, {s(sKVB)}, {s(sT+1)}")
        e(f"s_add_u32 {s(sKVB)}, {s(sKVB)}, {KVF0}")
        e(f"s_lshl_b32 {s(sSTO)}, {s(sTB3)}, 12")
        e(f"s_add_u32 {s(sSTO)}, {s(sSTO)}, {s(sKVB)}")
        e(f"v_mov_b32 {v(vT)}, 0")
        e(f"s_mov_b32 exec_lo, 0x10000000")
        e(f"s_mov_b32 exec_hi, 0x10000000")
        e(f"v_mov_b32 {v(vT)}, 0x3f803f80")
        e(f"s_mov_b64 exec, -1")
        e(f"s_mov_b32 vcc_lo, 0xf0000000")
        e(f"s_mov_b32 vcc_hi, 0xf0000000")
        def qk_(t, cs_, sc, P):
            ac = ACC[t]
            for i in range(0, 16, 2): e(pk('fma', ac + i, vNM, cs_ + i, ac + i, bc=(0,)))
            for i in range(0, 16, 2): e(pk('mul', ac + i, ac + i, sc, bc=(1,)))
            for x in self.pack16(P, ac): e(x)
            e("s_mov_b32 exec_lo, 0")
            e(f"v_mov_b32 {v(P+6)}, {'0' if t == 0 else '0x3f80'}")
            e(f"v_mov_b32 {v(P+7)}, 0")
            e("s_mov_b32 exec_lo, -1")
        qk_(1, self.CSK, vR, PK)
        for q in range(2):
            self.vmem(f"buffer_store_dwordx4 {v(PK+4*q,4)}, {v(vL16)}, {s(sWS,4)}, {s(sSTO)} offen offset:{1024*q} sc1", "o")
        ac = ACC[2]
        for i in range(0, 16, 2): e(pk('mul', ac + i, ac + i, self.TR + i))
        for i in range(0, 16, 2): e(pk('fma', ac + i, self.TN + i, vCV, ac + i, bc=(1,)))
        for x in self.pack16(PV, ac): e(x)
        for i in range(8): e(f"v_cndmask_b32 {v(PV+i)}, {v(PV+i)}, {v(vT)}, vcc")
        for q in range(2):
            self.vmem(f"buffer_store_dwordx4 {v(PV+4*q,4)}, {v(vL16)}, {s(sWS,4)}, {s(sSTO)} offen offset:{2048+1024*q} sc1", "o")
        self.stamp('kv_st')
        lab = self.newlabel("noimg")
        e(f"s_cmp_lg_u32 {s(sLAYER)}, 0")
        e(f"s_cbranch_scc1 {lab}")
        self.image_out()
        self.label(lab)
        if 'kvtouch' in self.opt:
            e(f"v_lshlrev_b32 {v(vT+1)}, 7, {v(vLANE)}")
            e(f"s_lshl_b32 {s(sT)}, {s(sLAYER)}, 31")
            e(f"v_or_b32 {v(vT+1)}, {s(sT)}, {v(vT+1)}")
            self.vmem(f"buffer_load_dword {v(vDUM)}, {v(vT+1)}, {s(sWS,4)}, {s(sTCH)} offen", "tch")
            e(f"s_add_u32 {s(sT)}, {s(sTCH)}, 8192")
            e(f"s_mov_b64 exec, {hex((1 << (SETSZ//16384 - 64)) - 1)}")
            self.vmem(f"buffer_load_dword {v(vDUM)}, {v(vT+1)}, {s(sWS,4)}, {s(sT)} offen", "tch")
            e("s_mov_b64 exec, -1")
            for p_, vo in [(sPWO, self.TW), (sPW1, self.TW), (sPW2, self.TW), (sPW3, self.TW + 1), (sPW4, self.TW + 1)]:
                self.vmem(f"global_load_dword {v(vDUM)}, {v(vo)}, {s(p_,2)}", "tch")
        qk_(0, self.CSQ, vRQ, PQ)
        e(f"s_lshl_b32 {s(sT)}, {s(sWAVE)}, 11")
        e(f"s_add_u32 {s(sT)}, {s(sT)}, {XCH}")
        e(f"v_add_u32 {v(vT+1)}, {s(sT)}, {v(vL16)}")
        for q in range(2): self.lds(f"ds_write_b128 {v(vT+1)}, {v(PQ+4*q,4)} offset:{1024*q}", "qw")
        e(f"s_lshl_b32 {s(sT+1)}, {s(sWAVE)}, 12")
        e(f"s_add_u32 {s(sKVB)}, {s(sKVB)}, {s(sT+1)}")
        e(f"s_mov_b32 {s(sNP)}, 1")

    def attention(self):
        e = self.e
        Q, S, T, P, M = V(16), [V(48), V(64)], V(80), V(88), V(96)
        OW = 160
        O = [V(OW), A(16), A(32), A(48)]
        KV, PK = A(64), V(self.PK)
        sOFF = sT + 6
        retry = "L_attn_retry"
        def ldk(dst, tag, so=sOFF):
            return [(f"buffer_load_dwordx4 {dst(4*q,4)}, {v(vL16)}, {s(sWS,4)}, {s(so)} offen offset:{1024*q} sc1", tag) for q in range(2)]
        def ldv(dst, tag):
            return [(f"buffer_load_dwordx4 {dst(8+4*q,4)}, {v(vL16)}, {s(sWS,4)}, {s(sOFF)} offen offset:{2048+1024*q} sc1", tag) for q in range(2)]
        adv = [(f"s_add_u32 {s(sKV)}, {s(sKV)}, 0x4000", None), (f"s_and_b32 {s(sKV)}, {s(sKV)}, 0x3ffff", None),
               (f"s_add_u32 {s(sOFF)}, {s(sKV)}, {s(sKVB)}", None)]
        def zero():
            for i in range(16): e(f"v_mov_b32 {O[0](i)}, 0")
            for j in range(1, 4):
                for i in range(16): e(f"v_accvgpr_write_b32 {O[j](i)}, 0")
            for i in range(4): e(f"v_accvgpr_write_b32 {KV(60+i)}, 0")
            for i in range(8): e(f"v_mov_b32 {P(i)}, 0")
            for i in range(8): e(f"v_mov_b32 {T(i)}, 0")
            for i in range(4): e(f"v_mov_b32 {M(i)}, 0xff800000")
            e(f"s_mov_b32 {s(sCNT)}, 0")
        zero()
        for i in range(4):
            e(f"s_add_u32 {s(sT)}, {s(sWAVE)}, {i}")
            e(f"s_and_b32 {s(sT)}, {s(sT)}, 3")
            e(f"s_lshl_b32 {s(sT)}, {s(sT)}, 11")
            e(f"s_add_u32 {s(sT)}, {s(sT)}, {XCH}")
            e(f"v_add_u32 {v(vT+1+i)}, {s(sT)}, {v(vL16)}")
        e(f"v_mov_b32 {v(vT)}, {s(sPH)}")
        e(f"s_getreg_b32 {s(sT+2)}, hwreg(HW_REG_XCC_ID, 0, 3)")
        e(f"s_add_u32 {s(sT+2)}, {s(sT+2)}, {s(sPH)}")
        e(f"s_add_u32 {s(sT+2)}, {s(sT+2)}, 32")
        e(f"v_mov_b32 {v(vT+6)}, {s(sT+2)}")
        e(f"s_add_u32 {s(sT+2)}, {s(sFLG)}, {XTAB}")
        e(f"s_mov_b32 {s(sMSK)}, 0xffff")
        e(f"s_mov_b32 {s(sMSK+1)}, 0")
        e(f"s_cmp_lg_u32 {s(sWAVE)}, 0")
        self.wait(vm="o", lg=0)
        e("s_barrier")
        lab = self.newlabel("kvf")
        e(f"s_cbranch_scc1 {lab}")
        e("s_mov_b64 exec, 1")
        e(f"buffer_store_dword {v(vT)}, off, {s(sWS,4)}, {s(sKFL)} sc1")
        e(f"buffer_store_dword {v(vT+6)}, off, {s(sWS,4)}, {s(sT+2)} sc1")
        e("s_mov_b64 exec, -1")
        self.label(lab)
        self.stamp('kv_flag')
        e(f"v_and_b32 {v(vT)}, 31, {v(vLANE)}")
        e(f"v_mul_u32_u24 {v(vT+6)}, 896, {v(vT)}")
        e(f"v_lshrrev_b32 {v(vT)}, 5, {v(vLANE)}")
        e(f"v_lshl_add_u32 {v(vT+6)}, {v(vT)}, 4, {v(vT+6)}")
        e(f"s_lshl_b32 {s(sT)}, {s(sLAYER)}, 31")
        e(f"v_or_b32 {v(vT+6)}, {s(sT)}, {v(vT+6)}")
        e(f"s_mul_i32 {s(sT)}, {s(sTB)}, {32*896}")
        e(f"s_lshl_b32 {s(sT+1)}, {s(sNT)}, 6")
        e(f"s_add_u32 {s(sT)}, {s(sT)}, {s(sT+1)}")
        for q in range(2):
            self.vmem(f"buffer_load_dwordx4 {v(XP+4*q,4)}, {v(vT+6)}, {s(sX,4)}, {s(sT)} offen offset:{32*q}", "xo")
        for i in range(4):
            for q in range(2): self.lds(f"ds_read_b128 {Q(8*i+4*q,4)}, {v(vT+1+i)} offset:{1024*q}", "q")
        e(f"v_and_b32 {v(vT+5)}, 31, {v(vLANE)}")
        e(f"v_lshlrev_b32 {v(vT+5)}, 2, {v(vT+5)}")
        self.wait(lg=0)
        pp, ppd = "L_attn_pp", "L_attn_ppd"
        self.label(pp)
        def qk(dst, kf, i):
            self.mfma(dst(0, 16), kf(0, 4), Q(8 * i, 4), "0")
            self.mfma(dst(0, 16), kf(4, 4), Q(8 * i + 4, 4), dst(0, 16))
        def mx(src, i):
            for r in range(8): e(f"v_max3_f32 {M(i)}, {src(2*r)}, {src(2*r+1)}, {M(i)}")
        qk(S[0], PK, 0); qk(S[1], PK, 1)
        self.nop(10)
        mx(S[0], 0); qk(S[0], PK, 2)
        self.nop(2)
        mx(S[1], 1); qk(S[1], PK, 3)
        self.poll_issue(self.KVP)
        self.nop(1)
        mx(S[0], 2)
        self.nop(4)
        mx(S[1], 3)
        e(f"s_add_u32 {s(sCNT)}, {s(sCNT)}, 1")
        e(f"s_cmp_ge_u32 {s(sCNT)}, {s(sNP)}")
        e(f"s_cbranch_scc0 L_attn_next")
        self.label(ppd)
        def nxt_tile():
            self.label(retry)
            zero()
            self.label("L_attn_next")
            e(f"s_lshl_b32 {s(sT)}, {s(sCNT)}, 14")
            e(f"s_add_u32 {s(sT)}, {s(sT)}, {s(sKVB)}")
            for x in ldk(PK, "pk", sT): e(x[0])
            e("s_waitcnt vmcnt(0)")
            e(f"s_branch {pp}")
        self.outofline.append(nxt_tile)
        for i in range(4): e(f"v_mov_b32 {v(vT+i)}, {M(i)}")
        self.nop(1)
        for i in range(4): e(f"v_permlane32_swap_b32 {v(vT+i)}, {M(i)}")
        for i in range(4): e(f"v_max_f32 {M(i)}, {M(i)}, {v(vT+i)}")
        for i in range(4): e(f"v_cvt_pk_bf16_f32 {v(vT+i)}, -{M(i)}, 0")
        for i in range(4): e(f"v_lshlrev_b32 {M(i)}, 16, {v(vT+i)}")
        e("s_mov_b32 exec_lo, 0")
        for i in range(4): e(f"v_mov_b32 {Q(8*i+6)}, {v(vT+i)}")
        e("s_mov_b32 exec_lo, -1")
        e(f"s_lshl_b32 {s(sKV)}, {s(sSET)}, 15")
        e(f"s_add_u32 {s(sOFF)}, {s(sKV)}, {s(sKVB)}")
        self.stamp('at_pp')
        self.poll(0, True, self.KVP)
        self.stamp('at_poll')
        for t in range(4):
            b = KV.at(16 * t)
            for x in ldk(b, f"k{t}"): self.emit1(x)
            if t < 3:
                for x in ldv(b, f"v{t}"): self.emit1(x)
                for x in adv: self.emit1(x)
        self.wait(vm="v0")
        e(f"s_mov_b32 {s(sIT)}, 0")
        qk(S[0], KV, 0)
        self.nop(9)
        self.stamp('at_loop0')

        def body(it, last, fill):
            fill = list(fill)
            for n in range(16):
                jj, i = n >> 2, n & 3
                cur, nx = S[n & 1], S[(n + 1) & 1]
                kb = KV.at(16 * (((n + 1) >> 2) & 3)); qi = (n + 1) & 3
                pb = KV.at(16 * (((n - 1) >> 2) & 3)); po = (n - 1) & 3
                slots = [[], [], [], []]
                tprev = 4 * it + jj - 1 + 4
                if i == 0 and (not last or jj == 0):
                    x = ldv(KV.at(16 * ((jj - 1) & 3)), f"v{tprev}")
                    slots[2].append(x[0]); slots[3].append(x[1])
                if i == 1 and not last:
                    for q in range(3): slots[q].append(adv[q])
                if i == 2 and not last and 'notouch' not in self.opt:
                    slots[0].append((f"buffer_load_dword {v(vDUM)}, {v(vTCH)}, {s(sWS,4)}, {s(sTCH)} offen", "tch"))
                    slots[1].append((f"s_add_u32 {s(sTCH)}, {s(sTCH)}, {TLINES*128}", None))
                if i == 1 and not last and 'notouch' not in self.opt:
                    p_, vo = [(sPWO, self.TW), (sPW1, self.TW), (sPW3, self.TW + 1), (sPW4, self.TW + 1)][jj]
                    slots[3].append((f"global_load_dword {v(vDUM)}, {v(vo)}, {s(p_,2)}", "tch"))
                if i == 0 and not last and 'zst' in self.opt:
                    sz, sl_ = (sZH, sZH + 1) if jj < 3 else (sZX, sZX + 1)
                    slots[0].append((f"buffer_store_dwordx4 {v(vOST,4)}, {v(self.ZO)}, {s(sWS,4)}, {s(sz)} offen sc1", "zst"))
                    slots[1].append((f"s_add_u32 {s(sz)}, {s(sz)}, 1024", None))
                    slots[1].append((f"s_min_u32 {s(sz)}, {s(sz)}, {s(sl_)}", None))
                if n == 6 and not last and 'notouch' not in self.opt:
                    slots[2].append((f"global_load_dword {v(vDUM)}, {v(self.TW)}, {s(sPW2,2)}", "tch"))
                if n == 14 and not last and 'notouch' not in self.opt:
                    slots[2].append((f"v_add_u32 {v(self.TW)}, 128, {v(self.TW)}", None))
                    slots[2].append((f"v_add_u32 {v(self.TW+1)}, 128, {v(self.TW+1)}", None))
                if i == 2 and not (last and jj == 3):
                    slots[3].append(('WAIT', f"v{4*it+jj+1}"))
                if i == 3 and not last:
                    x = ldk(KV.at(16 * jj), f"k{4*it+jj+4}")
                    slots[0].append(x[0]); slots[1].append(x[1])
                if n == 15 and not last:
                    slots[2].append((f"s_add_u32 {s(sIT)}, {s(sIT)}, 1", None))
                    slots[3].append((f"s_cmp_lt_u32 {s(sIT)}, 3", None))
                if last and n >= 1:
                    for q in range(4):
                        if not slots[q]:
                            for _ in range(2):
                                if fill: slots[q].append(fill.pop(0))
                for g in range(4):
                    if g == 0 and not (last and n == 15): self.mfma(nx(0, 16), kb(0, 4), Q(8 * qi, 4), "0")
                    if g == 1 and not (last and n == 15): self.mfma(nx(0, 16), kb(4, 4), Q(8 * qi + 4, 4), nx(0, 16))
                    if g == 2: self.mfma(O[po](0, 16), pb(12, 4), P(4, 4), O[po](0, 16))
                    if g == 3: self.mfma(O[i](0, 16), KV(16 * jj + 8, 4), P(0, 4), O[i](0, 16))
                    for x in slots[g]:
                        if x[0] == 'WAIT': self.wait(vm=x[1])
                        else: self.emit1(x)
                    gp = (g - 1) & 3
                    tp = T.at(4 * (gp & 1))
                    if last and n == 15 and g < 2: self.nop(1)
                    e(f"v_cvt_pk_bf16_f32 {P(2*gp)}, {tp(0)}, {tp(1)}")
                    e(f"v_cvt_pk_bf16_f32 {P(2*gp+1)}, {tp(2)}, {tp(3)}")
                    for r in range(4): e(f"v_exp_f32 {T(4*(g&1)+r)}, {cur(4*g+r)}")
            for x in fill: self.emit1(x)

        loop = "L_attn_loop"
        self.label(loop)
        n0 = len(self.lines)
        body(0, False, [])
        ref = self.lines[n0:]
        for it in (1, 2):
            n1 = len(self.lines)
            body(it, False, [])
            other = self.lines[n1:]
            del self.lines[n1:]
            assert len(other) == len(ref)
            for k, (x, y) in enumerate(zip(ref, other)):
                if x != y:
                    nx_, ny_ = (int(re.fullmatch(r"\s*s_waitcnt vmcnt\((\d+)\)", z).group(1)) for z in (x, y))
                    ref[k] = self.lines[n0 + k] = f"    s_waitcnt vmcnt({min(nx_, ny_)})"
        e(f"s_cbranch_scc1 {loop}")
        fill = [(f"buffer_load_dword {v(vPF)}, {v(vT+5)}, {s(sWS,4)}, {s(sXT)} offen sc1", "xt")]
        if 'nolate' not in self.opt:
            fill.append((f"buffer_load_dword {v(vDUM)}, {v(vTCO)}, {s(sWS,4)}, 0 offen sc1", "tch"))
        for it_ in self.with_init(self.dma_g8(sPWO, 448 * 896, 896, sCS, 128, 0, S0, S1, vG8, "wo")) + \
                   self.with_init(self.dma_g8(sPW1, 448 * 896, 896, sCS, 128, 0, S2, S3, vG8, "w1")): fill += it_
        self.stamp('at_it3')
        body(3, True, fill)
        self.nop(1)
        e(f"v_cvt_pk_bf16_f32 {P(6)}, {T(4)}, {T(5)}")
        e(f"v_cvt_pk_bf16_f32 {P(7)}, {T(6)}, {T(7)}")
        e(f"s_mov_b32 {s(sT)}, 0")
        e(f"v_mov_b32 {v(vT+4)}, {fx(2.0**30)}")
        self.mfma(O[3](0, 16), KV(60, 4), P(4, 4), O[3](0, 16))
        self.stamp('at_loop1')
        ok = "L_attn_ok"
        e(f"v_cmp_nlt_f32 vcc, {O[0](12)}, {v(vT+4)}")
        e(f"v_accvgpr_read_b32 {v(vT+1)}, {O[1](12)}")
        e(f"s_or_b32 {s(sT)}, {s(sT)}, vcc_hi")
        e(f"v_cmp_nlt_f32 vcc, {v(vT+1)}, {v(vT+4)}")
        e(f"v_accvgpr_read_b32 {v(vT+2)}, {O[2](12)}")
        e(f"s_or_b32 {s(sT)}, {s(sT)}, vcc_hi")
        e(f"v_cmp_nlt_f32 vcc, {v(vT+2)}, {v(vT+4)}")
        e("s_mov_b32 exec_lo, 0")
        e(f"s_or_b32 {s(sT)}, {s(sT)}, vcc_hi")
        for i in range(1, 3): e(f"v_accvgpr_write_b32 {O[i](13)}, {M(i)}")
        e("s_mov_b32 exec_lo, -1")
        e(f"v_accvgpr_read_b32 {v(vT+3)}, {O[3](12)}")
        e("s_mov_b32 exec_lo, 0")
        e(f"v_accvgpr_write_b32 {O[3](13)}, {M(3)}")
        e("s_mov_b32 exec_lo, -1")
        e(f"v_cmp_nlt_f32 vcc, {v(vT+3)}, {v(vT+4)}")
        e(f"s_or_b32 {s(sT)}, {s(sT)}, vcc_hi")
        e(f"s_cmp_eq_u32 {s(sT)}, 0")
        e(f"s_cbranch_scc0 L_attn_ovf")
        self.label(ok)
        def ovf():
            self.label("L_attn_ovf")
            e(f"s_cmp_lg_u32 {s(sNP)}, 1")
            e(f"s_cbranch_scc1 {ok}")
            e(f"s_mov_b32 {s(sNP)}, 16")
            e("s_mov_b32 exec_lo, 0")
            for i in range(4): e(f"v_mov_b32 {Q(8*i+6)}, 0")
            e("s_mov_b32 exec_lo, -1")
            e("s_waitcnt vmcnt(0)")
            e(f"s_branch {retry}")
        self.outofline.append(ovf)
        RB = 112
        sv = [self.CW + i for i in range(3)]
        for i in range(1, 4):
            for q in range(4):
                self.lds(f"ds_write_b128 {v(sv[i-1])}, {O[i](4*q,4)} offset:{1024*q}", "cw")
        mlp, mok = "L_mode_loop", "L_mode_ok"
        e(f"s_add_u32 {s(sPV)}, {s(sPH)}, 32")
        self.wait(vm="xt")
        e(f"v_subrev_u32 {v(vPF)}, {s(sPV)}, {v(vPF)}")
        e(f"v_cmp_lt_u32 vcc, 7, {v(vPF)}")
        e(f"s_cmp_eq_u64 vcc, 0")
        e(f"s_cbranch_scc0 {mlp}")
        self.label(mok)
        def modeloop():
            self.label(mlp)
            e(f"s_mov_b32 {s(sSPIN)}, 0")
            l2 = self.newlabel("ml")
            self.label(l2)
            e(f"s_add_u32 {s(sSPIN)}, {s(sSPIN)}, 1")
            e(f"s_cmp_ge_u32 {s(sSPIN)}, {SPIN_MAX}")
            e(f"s_cbranch_scc1 {mok}")
            e(f"buffer_load_dword {v(vPF)}, {v(vT+5)}, {s(sWS,4)}, {s(sXT)} offen sc1")
            e("s_waitcnt vmcnt(0)")
            e(f"v_subrev_u32 {v(vPF)}, {s(sPV)}, {v(vPF)}")
            e(f"v_cmp_lt_u32 vcc, 7, {v(vPF)}")
            e(f"s_cmp_eq_u64 vcc, 0")
            e(f"s_cbranch_scc0 {l2}")
            e(f"s_branch {mok}")
        self.outofline.append(modeloop)
        e(f"v_readfirstlane_b32 {s(sT)}, {v(vPF)}")
        self.wait(lg=0)
        e("s_barrier")
        for j in range(3):
            self.lds(f"ds_read_b128 {v(RB+16*j+12,4)}, {v(self.CW+3)} offset:{4096*j+3072}", f"crm")
        for j in range(3):
            for q in range(3):
                self.lds(f"ds_read_b128 {v(RB+16*j+4*q,4)}, {v(self.CW+3)} offset:{4096*j+1024*q}", f"cr{j}")
        e(f"v_cmp_ne_u32 vcc, {s(sT)}, {v(vPF)}")
        e(f"s_mov_b32 {s(sMODE)}, vcc_lo")
        if self.force_slow: e(f"s_mov_b32 {s(sMODE)}, 1")
        NM, F = 180, 184
        e(f"v_mov_b32 {v(NM)}, {M(0)}")
        self.wait(lg="crm")
        for j in range(3):
            e(f"v_mov_b32 {v(vT+j)}, {v(RB+16*j+13)}")
            e(f"v_mov_b32 {v(NM+1+j)}, {v(RB+16*j+13)}")
        self.nop(1)
        for j in range(3): e(f"v_permlane32_swap_b32 {v(vT+j)}, {v(NM+1+j)}")
        e(f"v_min3_f32 {v(vT+3)}, {v(NM)}, {v(NM+1)}, {v(NM+2)}")
        e(f"v_min_f32 {v(vT+3)}, {v(vT+3)}, {v(NM+3)}")
        for j in range(4): e(f"v_sub_f32 {v(F+j)}, {v(vT+3)}, {v(NM+j)}")
        for j in range(4): e(f"v_exp_f32 {v(F+j)}, {v(F+j)}")
        e(f"v_mul_f32 {v(vT)}, {v(F)}, {v(OW+12)}")
        for j in range(3): e(f"v_fmac_f32 {v(vT)}, {v(F+1+j)}, {v(RB+16*j+12)}")
        e(f"v_mov_b32 {v(vT+1)}, {v(vT)}")
        self.nop(2)
        e(f"v_permlane32_swap_b32 {v(vT+1)}, {v(vT)}")
        e(f"v_rcp_f32 {v(vT)}, {v(vT)}")
        self.nop(1)
        for j in range(4): e(f"v_mul_f32 {v(F+j)}, {v(F+j)}, {v(vT)}")
        for i in range(0, 16, 2): e(pk('mul', OW + i, OW + i, F, bc=(1,)))
        for j in range(3):
            self.wait(lg=f"cr{j}")
            for i in range(0, 16, 2): e(pk('fma', OW + i, RB + 16 * j + i, F + 1 + j, OW + i, bc=(1,)))
        for x in self.pack16(RB, OW): e(x)
        def st(f):
            for q in range(4):
                if q == 3: e("s_mov_b32 exec_hi, 0")
                self.vmem(f"buffer_store_dwordx2 {v(RB+2*q,2)}, {v(vOST+q)}, {s(sWS,4)}, 0 offen{f}", "o")
            e("s_mov_b32 exec_hi, -1")
        self.moded(st)
        self.signal(1)

    def tile_addr(self, sdst, region):
        self.e(f"s_add_u32 {s(sdst)}, {s(sTILE)}, {region}")
    def stat_addr(self, sdst, region):
        self.e(f"s_add_u32 {s(sdst)}, {s(sSTAT)}, {region}")
    def keep_send_addr(self, lds, khstride, d0=vA0, d1=vA1):
        e = self.e
        e(f"s_mul_i32 {s(sT)}, {s(sKH)}, {khstride + 512}")
        if lds: e(f"s_add_u32 {s(sT)}, {s(sT)}, {lds}")
        e(f"v_add_u32 {v(d0)}, {s(sT)}, {v(vTR)}")
        e(f"v_xor_b32 {v(d1)}, 512, {v(d0)}")
    def wregs(self, kind):
        self.keep_send_addr({'wo': S0, 'w1': S2, 'w2': S0}[kind], SLOT)
        for q in range(14):
            for t in range(2):
                for x in self.tr2(A(8 * q + 4 * t), [vA0, vA1][t], q * 2048, 1024, "wr"): self.emit1(x)
    def xch_write(self, send):
        for q in range(4): self.lds(f"ds_write_b128 {v(vXW)}, {v(send+4*q,4)} offset:{1024*q}", "xw")
    def xch_read(self, recv):
        self.wait(lg=0)
        self.e("s_barrier")
        for q in range(4): self.lds(f"ds_read_b128 {v(recv+4*q,4)}, {v(vXR)} offset:{1024*q}", f"xr{q}")
    def xch_add(self, dst, keep, recv):
        for q in range(4):
            self.wait(lg=f"xr{q}")
            for i in (0, 2): self.e(pk('add', dst + 4 * q + i, keep + 4 * q + i, recv + 4 * q + i))

    def small(self, kind):
        e = self.e
        W, B = A(0), A(112)
        K_, S_, RV, STT, CS, TMP, PKD, Y = 32, 48, 64, 80, 96, 112, 144, 152
        ph = {'wo': 1, 'w1': 2, 'w2': 3}[kind]
        self.c(f"================ {kind}")
        if kind == 'wo':
            self.wregs('wo')
        src = {'wo': OF, 'w1': XA, 'w2': HF}[kind]
        vB = [vT + 3, vT + 4]
        if kind != 'w2':
            e(f"s_add_u32 {s(sT+2)}, {s(sBB)}, {src}")
            e(f"v_add_u32 {v(vT+3)}, {s(sT+2)}, {v(vL16)}")
            vB = [vT + 3, vT + 3]
        else:
            vB = [self.HB, self.HB + 1]
        outr = {'wo': XA, 'w1': HF, 'w2': X1}[kind]
        self.tile_addr(sOUT, outr)
        if kind != 'w1': self.stat_addr(sSTO, {'wo': STA, 'w2': ST1}[kind])
        if kind == 'wo':
            e(f"s_lshr_b32 {s(sT+1)}, {s(sRB4)}, 1")
            self.setmask(0xffff, sT + 1, 16)
            init, dma = self.dma_g8(sPW2, 448 * 896, 896, sCS, 128, 0, S0, S1, vG8, "w2")
        elif kind == 'w1':
            self.setmask(0x7f, sRB4, 7)
            self.stats_base(sSTO, STA, sTB)
            init, dma = self.dma_g8(sPW3, 448 * 3584, 3584, sFS, 256, 0, S2, S3, self.G3, "w3a")
        else:
            e(f"s_mov_b32 {s(sMSK)}, {s(sM2)}")
            e(f"s_mov_b32 {s(sMSK+1)}, {s(sHM)}")
            init, dma = self.dma_g8(sPW3, 448 * 3584, 3584, sFS, 256, 128, S4, S0, self.G3, "w3b")
        for x in init: e(x)
        issued = False
        if kind == 'wo':
            l1, l2 = self.newlabel("xr1"), self.newlabel("xr2")
            e(f"s_cmp_lg_u32 {s(sLAYER)}, 0")
            e(f"s_cbranch_scc1 {l1}")
            for i in (0, 1, 4, 5): e(f"v_permlane32_swap_b32 {v(XP+i)}, {v(XP+i+2)}")
            for i in range(8):
                e(f"v_lshlrev_b32 {v(vX+2*i)}, 16, {v(XP+i)}")
                e(f"v_and_b32 {v(vX+2*i+1)}, 0xffff0000, {v(XP+i)}")
            self.label(l2)
            def x1():
                self.label(l1)
                for i in range(16): e(f"v_accvgpr_read_b32 {v(vX+i)}, {a(200+i)}")
                e(f"s_branch {l2}")
            self.outofline.append(x1)
            self.wait(lg=0)
        elif kind == 'w1':
            ONE, CSS = A(176), A(180)
            self.ones(ONE)
            self.nop(2)
            for q in range(14):
                self.mfma(CSS(0, 16), W(8 * q + 4, 4), ONE(0, 4), "0" if q == 0 else CSS(0, 16))
            for q in range(14):
                self.mfma(v(CS, 16), W(8 * q, 4), ONE(0, 4), "0" if q == 0 else v(CS, 16))
                if q == 2:
                    self.cs_write(CSS)
                if q == 6:
                    self.poll_issue(); issued = True
            e(f"s_xor_b32 {s(sT)}, {s(sWAVE)}, 2")
            e(f"s_lshl_b32 {s(sT)}, {s(sT)}, 7")
            e(f"v_add_u32 {v(vT+5)}, {s(sT)}, {v(vCSA)}")
            self.wait(lg=0)
        else:
            e(f"v_mul_f32 {v(TMP)}, {v(vMEAN)}, {v(vR1)}")
            for i in range(0, 16, 2): e(pk('fma', Y + i, vX + i, vR1, TMP, bc=(1, 2), neg=(2,)))
        self.poll(ph, issued, self.P2 if kind == 'w2' else vPOLL)
        self.stamp(kind + '_poll')
        bl = [(f"buffer_load_dwordx4 {B(4*q,4)}, {v(vB[q//7])}, {s(sWS,4)}, {self.c4(q//4)} offen offset:{1024*(q%4)} sc1", f"b{q}") for q in range(14)]
        fill = {}
        if kind == 'w1':
            st = self.stats_loads(STT, sSTO)
            rest = self.burst(bl[:2] + st + bl[2:], [2, 4, 4])
            vNM, vGA, vGB, vIR, vRR = STT + 2, STT + 3, STT + 4, STT + 5, STT + 6
            sf = self.cs_reads(RV, 0, vT + 5) + self.stats_sum(STT) + self.stats_finish(STT, STT + 1) + [
                f"v_add_f32 {v(vRR)}, {fx(EPS)}, {v(STT+1)}", f"v_rsq_f32 {v(vR1)}, {v(vRR)}",
                f"v_sub_f32 {v(vNM)}, 0, {v(vMEAN)}", f"v_mul_f32 {v(vRR)}, {v(vR1)}, {v(vR1)}",
                f"v_mov_b32 {v(vGA)}, {fx(EPS)}", f"v_fmac_f32 {v(vGA)}, {v(vRR)}, {v(STT+1)}",
                f"v_rsq_f32 {v(vRR)}, {v(vGA)}", "s_nop 0", f"v_mul_f32 {v(vRR)}, {v(vRR)}, {v(vR1)}"] + \
                self.gelu_consts(vRR, vGA, vGB, vIR) + ["s_waitcnt lgkmcnt(0)"] + \
                [f"v_add_f32 {v(CS+i)}, {v(CS+i)}, {v(RV+i)}" for i in range(16)]
            fill = {2 + i: sf[6 * i:6 * i + 6] for i in range((len(sf) + 5) // 6)}
            assert max(fill) <= 13
        else:
            rest = self.burst(bl, [3, 3, 2])
        for q in range(14):
            self.wait(vm=[f"b{q}", "st"] if q == 2 else f"b{q}")
            if q == 0: self.stamp(kind + '_b0')
            fl = fill.get(q, [])
            for t in (1, 0):
                acc = v([K_, S_][t], 16)
                self.mfma(acc, W(8 * q + 4 * t, 4), B(4 * q, 4), "0" if q == 0 else acc)
                if t == 1:
                    if rest: self.emit1(rest.pop(0))
                    elif q < 13: self.emit_item(dma.pop(0))
                for x in fl[3 * (1 - t):3 * (1 - t) + 3]: self.emit1(x)
        self.lg = []
        self.stamp(kind + '_kloop')
        self.emit_item(dma.pop(0))
        self.nop(8)
        self.xch_write(S_)
        if kind == 'wo': pre = [pk('add', vX + i, vX + i, K_ + i) for i in range(0, 16, 2)]
        elif kind == 'w1': pre = [pk('fma', K_ + i, vNM, CS + i, K_ + i, bc=(0,)) for i in range(0, 16, 2)]
        else: pre = [pk('add', K_ + i, K_ + i, Y + i) for i in range(0, 16, 2)]
        self.weave(pre, dma, 8)
        self.xch_read(RV)
        self.emit_item(dma.pop(0))
        self.stamp(kind + '_xch')
        def st_tile(f):
            for q in range(2):
                self.vmem(f"buffer_store_dwordx4 {v(PKD+4*q,4)}, {v(vL16)}, {s(sWS,4)}, {s(sOUT)} offen offset:{1024*q}{f}", "o")
        def st_stat(f):
            self.vmem(f"buffer_store_dword {v(TMP)}, {v(vL16)}, {s(sWS,4)}, {s(sSTO)} offen{f}", "o")
        if kind == 'w1':
            self.xch_add(K_, K_, RV)
            self.weave(self.gelu_pk(K_, None, TMP, PKD, vNM, vGA, vGB, vIR), dma, 12)
            self.emit_items(dma)
            nh = self.newlabel("nohalo")
            e(f"s_cmp_eq_u32 {s(sHX)}, 0")
            e(f"s_cbranch_scc1 {nh}")
            e(f"s_mov_b32 exec_lo, {s(sHX)}")
            e(f"s_mov_b32 exec_hi, {s(sHX)}")
            e(f"s_add_u32 {s(sT+3)}, {s(sOUT)}, {s(sHD)}")
            for q in range(2):
                e(f"buffer_store_dwordx4 {v(PKD+4*q,4)}, {v(vL16)}, {s(sWS,4)}, {s(sT+3)} offen offset:{1024*q} sc1")
            e("s_mov_b64 exec, -1")
            self.label(nh)
            self.moded(st_tile)
        else:
            dst = vX if kind == 'wo' else K_
            self.xch_add(dst, dst, RV)
            for x in self.pack16(PKD, dst): e(x)
            self.moded(st_tile)
            self.weave(self.stats_partial(dst, TMP), dma, 6)
            self.moded(st_stat)
            self.emit_items(dma)
            if kind == 'w2':
                for i in range(0, 16, 2): e(pk('add', vX + i, vX + i, K_ + i))
        if kind != 'w2': self.wregs({'wo': 'w1', 'w1': 'w2'}[kind])
        self.signal(ph + 1, halo=(kind == 'w1'))

    def w3(self):
        e = self.e
        self.c("================ w3")
        B, AF = A(0), A(128)
        ACC = [32, 48, 64, 80]
        CS, STT, TMP, PKD = [96, 112], 128, 144, [160, 168]
        vM3 = STT + 7
        e(f"s_lshl_b32 {s(sT+2)}, {s(sSET)}, 3")
        e(f"s_lshl_b32 {s(sT+3)}, {s(sRB2)}, 2")
        e(f"s_add_u32 {s(sT+2)}, {s(sT+2)}, {s(sT+3)}")
        e(f"s_add_u32 {s(sT+6)}, {s(sT+2)}, {s(sWAVE)}")
        e(f"s_mul_i32 {s(sT+2)}, {s(sT+6)}, {SLOT}")
        e(f"s_add_u32 {s(sT+2)}, {s(sT+2)}, {s(sLB)}")
        e(f"s_add_u32 {s(sT+2)}, {s(sT+2)}, {X1}")
        e(f"v_add_u32 {v(vT+3)}, {s(sT+2)}, {v(vL16)}")
        e(f"s_mul_i32 {s(sT+5)}, {s(sT+6)}, {112*1024}")
        e(f"s_lshl_b32 {s(sT+3)}, {s(sFS)}, 13")
        e(f"s_add_u32 {s(sT+5)}, {s(sT+5)}, {s(sT+3)}")
        e(f"s_add_u32 {s(sT+5)}, {s(sT+5)}, {s(sLBH)}")
        e(f"s_add_u32 {s(sOUT)}, {s(sT+5)}, {HH}")
        e(f"v_add_u32 {v(vT+4)}, {s(sOUT)}, {v(vL16)}")
        self.stats_base(sSTO, ST1, sT + 6)
        self.setmask(0x3fff, sRB2, 14)
        self.w4_bases()
        e(f"s_and_b32 {s(sT+1)}, {s(sWAVE)}, 1")
        e(f"s_lshl_b32 {s(sT+1)}, {s(sT+1)}, 9")
        e(f"s_mov_b32 {s(sT+2)}, {S4}")
        e(f"s_cmp_lt_u32 {s(sWAVE)}, 2")
        e(f"s_cselect_b32 {s(sT+2)}, {S2}, {s(sT+2)}")
        e(f"s_cselect_b32 {s(sT+3)}, {S3}, {S0}")
        e(f"v_add_u32 {v(vT+1)}, {s(sT+1)}, {v(vTR)}")
        e(f"v_add_u32 {v(vT+2)}, {s(sT+3)}, {v(vT+1)}")
        e(f"v_add_u32 {v(vT+1)}, {s(sT+2)}, {v(vT+1)}")
        self.colsum_lds(vT + 1, vT + 2, 2048, 1024, mid=self.poll_issue)
        e(f"v_add_u32 {v(vA0)}, {S2}, {v(vTR)}")
        e(f"v_add_u32 {v(vA1)}, {S4}, {v(vTR)}")
        def aread(p, q):
            out = []
            if p == 0: va, off = vA0, q * 2048
            elif q < 14: va, off = vA1, q * 2048
            else: va, off = vTR, S0 + (q - 14) * 2048
            for t in range(2): out += self.tr2(AF.at(8 * ((q + 28 * p) % 3) + 4 * t), va, off + 512 * t, 1024, f"a{p}_{q}")
            return out
        for q in range(2):
            for x in aread(0, q): self.emit1(x)
        self.poll(4, True)
        self.stamp('w3_poll')
        bl = [(f"buffer_load_dwordx4 {B(4*q,4)}, {v(vT+3)}, {s(sWS,4)}, {self.c4(q//4)} offen offset:{1024*(q%4)} sc1", f"b{q}") for q in range(28)]
        st = self.stats_loads(STT, sSTO)
        rest = self.burst(bl[:3] + st + bl[3:], [3, 4, 5])
        rest = [[x] for x in rest]
        if 'hhlate' in self.opt:
            e(f"v_lshlrev_b32 {v(vT+5)}, 7, {v(vLANE)}")
            rest.append([(f"buffer_load_dword {v(vDUM)}, {v(vT+5)}, {s(sWS,4)}, {s(sOUT)} offen sc1", "tch")])
        rest += self.with_init(self.dma_w4chunk(0, S1, "c0"))
        vNM, vGA, vGB, vIR, vRR = STT + 2, STT + 3, STT + 4, STT + 5, STT + 6
        sf = self.stats_sum(STT) + self.stats_finish(STT, STT + 1, vM3) + [
            f"v_add_f32 {v(vRR)}, {fx(EPS)}, {v(STT+1)}", f"v_rsq_f32 {v(vRR)}, {v(vRR)}",
            f"v_sub_f32 {v(vNM)}, 0, {v(vM3)}"] + self.gelu_consts(vRR, vGA, vGB, vIR)
        fill = {4 + i: sf[4 * i:4 * i + 4] for i in range((len(sf) + 3) // 4)}
        fill[14] = self.cs_reads(CS[0], 0); fill[16] = self.cs_reads(CS[1], 128)
        def store(t):
            def f_(f):
                for q in range(2):
                    off = 2048 * t + 1024 * q
                    self.vmem(f"buffer_store_dwordx4 {v(PKD[t&1]+4*q,4)}, {v(vT+4)}, {s(sWS,4)}, {self.c4(off//4096)} offen offset:{off%4096}{f}", "o")
            self.moded(f_)
        g = []
        for p in range(2):
            for q in range(28):
                if p == 1 and q == 16:
                    e("s_barrier")
                    rest += self.with_init(self.dma_w4chunk(3, S4, "c3"))
                self.wait(vm=([f"b{q}", "st"] if q == 4 else f"b{q}") if p == 0 else None, lg=f"a{p}_{q}")
                if q + 2 < 28: nxt = aread(p, q + 2)
                elif p == 0: nxt = aread(1, q + 2 - 28)
                else: nxt = []
                fl = list(fill.get(q, [])) if p == 0 else []
                if p == 1 and q == 1:
                    g = self.gelu_scalar(ACC[0], CS[0], TMP, PKD[0], vNM, vGA, vGB, vIR)
                for t in range(2):
                    acc = v(ACC[2 * p + t], 16)
                    self.mfma(acc, AF(8 * ((q + 28 * p) % 3) + 4 * t, 4), B(4 * q, 4), "0" if q == 0 else acc)
                    for x in nxt[2 * t:2 * t + 2]: self.emit1(x)
                    if t == 0 and rest: self.emit_item(rest.pop(0))
                    for x in fl[2 * t:2 * t + 2]: self.emit1(x)
                    for _ in range(2 + t):
                        if g: e(g.pop(0))
            if p == 0:
                self.stamp('w3_pa')
                e("s_barrier")
                rest += self.with_init(self.dma_w4chunk(1, S2, "c1")) + self.with_init(self.dma_w4chunk(2, S3, "c2"))
        self.stamp('w3_pb')
        for x in g: e(x)
        store(0)
        for x in self.cs_reads(CS[0], 256): self.emit1(x)
        self.emit_items(rest)
        for t in (1, 2, 3):
            self.wait(lg=0)
            for x in self.gelu_pk(ACC[t], CS[t & 1], TMP, PKD[t & 1], vNM, vGA, vGB, vIR): e(x)
            if t == 1:
                for x in self.cs_reads(CS[1], 384): self.emit1(x)
            store(t)
        self.signal(5)

    def w4(self):
        e = self.e
        self.c("================ w4")
        B, AF = A(0), A(128)
        K_, S_, RV, TMP, PKD = 32, 48, 64, 112, 144
        slots = [S1, S2, S3, S4, S0, S1, S2, S3]
        AD = 80
        self.poll_issue()
        self.keep_send_addr(0, 14336)
        sl = {S0: 0, S1: 1, S2: 2, S3: 3, S4: 4}
        for b_, i in sl.items():
            e(f"v_add_u32 {v(AD+2*i)}, {b_}, {v(vA0)}")
            e(f"v_add_u32 {v(AD+2*i+1)}, {b_}, {v(vA1)}")
        e(f"s_mul_i32 {s(sT+2)}, {s(sTB)}, {112*1024}")
        e(f"s_mul_i32 {s(sT+3)}, {s(sKH)}, {56*1024}")
        e(f"s_add_u32 {s(sT+2)}, {s(sT+2)}, {s(sT+3)}")
        e(f"s_add_u32 {s(sT+2)}, {s(sT+2)}, {s(sLBH)}")
        e(f"s_add_u32 {s(sT+2)}, {s(sT+2)}, {HH}")
        e(f"v_add_u32 {v(vT+3)}, {s(sT+2)}, {v(vL16)}")
        e(f"v_add_u32 {v(vT+4)}, {28*1024}, {v(vT+3)}")
        self.tile_addr(sOUT, XF); self.stat_addr(sSTO, STF)
        self.wimg_bases()
        def aread(q):
            c, r = divmod(q, 7)
            i = sl[slots[c]]
            out = []
            for t in range(2): out += self.tr2(AF.at(8 * (q % 3) + 4 * t), AD + 2 * i + t, r * 2048, 1024, f"a{q}")
            return out
        def bload(q):
            r = q % 28
            return (f"buffer_load_dwordx4 {B(4*r,4)}, {v(vT+3+q//28)}, {s(sWS,4)}, {self.c4(r//4)} offen offset:{1024*(r%4)} sc1", f"b{q}")
        for q in range(2):
            for x in aread(q): self.emit1(x)
        self.poll(5, True)
        self.stamp('w4_poll')
        self.burst([bload(q) for q in range(10)], [3, 3, 4])
        nb = 10
        dq = self.with_init(self.dma_w4chunk(4, S0, "c4"))
        for q in range(56):
            c, r = divmod(q, 7)
            if r == 0 and c in (2, 4, 6): self.stamp(f'w4_c{c}')
            if r == 4 and 1 <= c <= 6:
                self.emit_items(dq); dq = []
                if c + 1 >= 4: self.wait(vm=f"c{c+1}")
                e("s_barrier")
                if c <= 3: dq = self.with_init(self.dma_w4chunk(c + 4, slots[c + 4], f"c{c+4}"))
            self.wait(vm=f"b{q}", lg=f"a{q}")
            nxt = aread(q + 2) if q + 2 < 56 else []
            for t in (1, 0):
                acc = v([K_, S_][t], 16)
                self.mfma(acc, AF(8 * (q % 3) + 4 * t, 4), B(4 * (q % 28), 4), "0" if q == 0 else acc)
                for x in nxt[2 * (1 - t):2 * (1 - t) + 2]: self.emit1(x)
                if t == 1 and nb < 56 and nb < q + 14:
                    self.emit1(bload(nb)); nb += 1
                if t == 0:
                    if dq: self.emit_item(dq.pop(0))
                    elif nb < 56 and nb < q + 14:
                        self.emit1(bload(nb)); nb += 1
        assert nb == 56 and not dq
        self.stamp('w4_kloop')
        fin = "L_final"
        e(f"s_cmp_lg_u32 {s(sLAYER)}, 0")
        e(f"s_cbranch_scc1 {fin}")
        lg0, vm0 = list(self.lg), list(self.vm)
        dq = self.dma_wimg(0, S4) + self.dma_wimg(1, S0) + self.dma_wimg(2, S1) + self.dma_wimg_cs()
        self.nop(9)
        self.xch_write(S_)
        for i in range(0, 16, 2): e(pk('add', vX + i, vX + i, K_ + i))
        self.xch_read(RV)
        self.xch_add(vX, vX, RV)
        for x in self.pack16(PKD, vX): e(x)
        def st_tile(f):
            for q in range(2):
                self.vmem(f"buffer_store_dwordx4 {v(PKD+4*q,4)}, {v(vL16)}, {s(sWS,4)}, {s(sOUT)} offen offset:{1024*q}{f}", "o")
        def st_stat(f):
            self.vmem(f"buffer_store_dword {v(TMP)}, {v(vL16)}, {s(sWS,4)}, {s(sSTO)} offen{f}", "o")
        self.moded(st_tile)
        for x in self.stats_partial(vX, TMP): e(x)
        self.moded(st_stat)
        for _ in range(6): self.emit_item(dq.pop(0))
        for i in range(16): e(f"v_accvgpr_write_b32 {a(200+i)}, {v(vX+i)}")
        self.signal(6, tags="o")
        self.emit_items(dq)
        self.vm = []
        e("s_branch L_qkv")
        def final():
            self.label(fin)
            self.lg, self.vm = lg0, vm0
            self.srd(sX, sPOUT, 2048 * 896)
            self.rowmajor_addr(vT + 1)
            self.xch_write(S_)
            for i in range(0, 16, 2): e(pk('add', vX + i, vX + i, K_ + i))
            self.xch_read(RV)
            self.xch_add(vX, vX, RV)
            for x in self.pack16(PKD, vX): e(x)
            for q in range(4):
                e(f"buffer_store_dwordx2 {v(PKD+2*q,2)}, {v(vT+1)}, {s(sX,4)}, {s(sT)} offen offset:{16*q}")
            self.stamp('w4_end')
            e("s_branch L_end")
            self.lg, self.vm = [], []
        self.outofline.append(final)

    def rowmajor_addr(self, dst):
        e = self.e
        e(f"v_and_b32 {v(vT)}, 31, {v(vLANE)}")
        e(f"v_mul_u32_u24 {v(dst)}, 896, {v(vT)}")
        e(f"v_lshrrev_b32 {v(vT)}, 5, {v(vLANE)}")
        e(f"v_lshl_add_u32 {v(dst)}, {v(vT)}, 3, {v(dst)}")
        e(f"s_mul_i32 {s(sT)}, {s(sTB)}, {32*896}")
        e(f"s_lshl_b32 {s(sT+1)}, {s(sNT)}, 6")
        e(f"s_add_u32 {s(sT)}, {s(sT)}, {s(sT+1)}")

    def roles(self):
        e = self.e
        self.setup2()
        e(f"s_mul_i32 {s(sRB4)}, {s(sR)}, 37")
        e(f"s_lshr_b32 {s(sRB4)}, {s(sRB4)}, 8")
        e(f"s_mul_i32 {s(sT)}, {s(sRB4)}, 7")
        e(f"s_sub_u32 {s(sCS)}, {s(sR)}, {s(sT)}")
        e(f"s_lshr_b32 {s(sRB2)}, {s(sRB4)}, 1")
        e(f"s_mul_i32 {s(sT)}, {s(sRB2)}, 14")
        e(f"s_sub_u32 {s(sFS)}, {s(sR)}, {s(sT)}")
        e(f"s_and_b32 {s(sTT)}, {s(sWAVE)}, 1")
        e(f"s_lshr_b32 {s(sKH)}, {s(sWAVE)}, 1")
        e(f"s_lshl_b32 {s(sTB)}, {s(sSET)}, 3")
        e(f"s_lshl_b32 {s(sT)}, {s(sRB4)}, 1")
        e(f"s_add_u32 {s(sT)}, {s(sT)}, {s(sTT)}")
        e(f"s_add_u32 {s(sTB)}, {s(sTB)}, {s(sT)}")
        e(f"s_cmp_eq_u32 {s(sT)}, 0")
        e(f"s_cselect_b32 {s(sHX)}, 3, 0")
        e(f"s_cmp_eq_u32 {s(sT)}, 7")
        e(f"s_cselect_b32 {s(sHX)}, 0xc0000000, {s(sHX)}")
        e(f"s_lshl_b32 {s(sNT)}, {s(sCS)}, 1")
        e(f"s_add_u32 {s(sNT)}, {s(sNT)}, {s(sKH)}")
        e(f"s_mov_b32 {s(sT+1)}, {LB0}")
        e(f"s_mul_i32 {s(sLB)}, {s(sSET)}, {SETSZ - U}")
        e(f"s_add_u32 {s(sLB)}, {s(sLB)}, {s(sT+1)}")
        e(f"s_mul_i32 {s(sLBS)}, {s(sSET)}, {SETSZ - 32768}")
        e(f"s_add_u32 {s(sLBS)}, {s(sLBS)}, {s(sT+1)}")
        e(f"s_mul_i32 {s(sLBH)}, {s(sSET)}, {SETSZ - 4*U}")
        e(f"s_add_u32 {s(sLBH)}, {s(sLBH)}, {s(sT+1)}")
        e(f"s_sub_u32 {s(sHD)}, {HF2G - HF}, {s(sLB)}")
        e(f"s_mul_i32 {s(sTCH)}, {s(sSET)}, {SETSZ}")
        e(f"s_add_u32 {s(sTCH)}, {s(sTCH)}, {s(sT+1)}")
        e(f"s_lshl_b32 {s(sT+1)}, {s(sR)}, 2")
        e(f"s_add_u32 {s(sT+1)}, {s(sT+1)}, {s(sWAVE)}")
        e(f"s_mul_i32 {s(sT+1)}, {s(sT+1)}, {TSZ // 128}")
        e(f"s_add_u32 {s(sTCH)}, {s(sTCH)}, {s(sT+1)}")
        e(f"v_lshlrev_b32 {v(vTCH)}, 7, {v(vLANE)}")
        e(f"s_mov_b32 exec_lo, {hex((0xffffffff << TLINES) & 0xffffffff)}")
        e(f"v_bfrev_b32 {v(vTCH)}, 1")
        e("s_mov_b32 exec_lo, -1")
        e(f"s_mul_i32 {s(sBB)}, {s(sTB)}, {SLOT}")
        e(f"s_add_u32 {s(sBB)}, {s(sBB)}, {s(sLB)}")
        e(f"s_lshl_b32 {s(sT+1)}, {s(sNT)}, 11")
        e(f"s_add_u32 {s(sTILE)}, {s(sBB)}, {s(sT+1)}")
        e(f"s_mul_i32 {s(sT+1)}, {s(sKH)}, 14336")
        e(f"s_add_u32 {s(sBB)}, {s(sBB)}, {s(sT+1)}")
        e(f"s_lshl_b32 {s(sSTAT)}, {s(sTB)}, 12")
        e(f"s_lshr_b32 {s(sT+1)}, {s(sNT)}, 2")
        e(f"s_lshl_b32 {s(sT+1)}, {s(sT+1)}, 10")
        e(f"s_add_u32 {s(sSTAT)}, {s(sSTAT)}, {s(sT+1)}")
        e(f"s_add_u32 {s(sSTAT)}, {s(sSTAT)}, {s(sLBS)}")
        e(f"s_and_b32 {s(sT+1)}, {s(sNT)}, 3")
        e(f"s_lshl_b32 {s(sT+1)}, {s(sT+1)}, 2")
        e(f"s_add_u32 {s(sSTAT)}, {s(sSTAT)}, {s(sT+1)}")
        e(f"s_lshl_b32 {s(sT)}, {s(sSET)}, 8")
        e(f"s_add_u32 {s(sXT)}, {s(sT)}, {XTAB}")
        e(f"s_lshl_b32 {s(sT+1)}, {s(sR)}, 2")
        e(f"s_add_u32 {s(sFLG)}, {s(sT)}, {s(sT+1)}")
        e(f"s_mov_b32 {s(sMODE)}, 1")
        e(f"s_lshl_b32 {s(sT+1)}, {s(sHEAD)}, 8")
        e(f"s_add_u32 {s(sT+1)}, {s(sT+1)}, {KVFLAG}")
        e(f"v_and_b32 {v(vT)}, 15, {v(vLANE)}")
        e(f"v_lshl_add_u32 {v(self.KVP)}, {v(vT)}, 2, {s(sT+1)}")
        e(f"s_lshl_b32 {s(sKFL)}, {s(sBLK)}, 2")
        e(f"s_add_u32 {s(sKFL)}, {s(sKFL)}, {s(sT+1)}")
        e(f"s_cmp_eq_u32 {s(sRB4)}, 0")
        e(f"s_cselect_b32 {s(sT+1)}, 7, 1")
        e(f"s_cselect_b32 {s(sT+2)}, 256, 0")
        e(f"s_add_u32 {s(sT+1)}, {s(sT+1)}, {s(sSET)}")
        e(f"s_and_b32 {s(sT+1)}, {s(sT+1)}, 7")
        e(f"s_lshl_b32 {s(sT+1)}, {s(sT+1)}, 9")
        e(f"s_add_u32 {s(sT+1)}, {s(sT+1)}, {s(sT+2)}")
        e(f"s_mov_b32 {s(sT+3)}, {HFLAG}")
        e(f"s_add_u32 {s(sT+1)}, {s(sT+1)}, {s(sT+3)}")
        e(f"v_and_b32 {v(vT+5)}, 31, {v(vLANE)}")
        e(f"v_lshlrev_b32 {v(vT+5)}, 2, {v(vT+5)}")
        e(f"s_cmp_eq_u32 {s(sRB4)}, 1")
        e(f"s_cselect_b32 {s(sT+1)}, {s(sT)}, {s(sT+1)}")
        e(f"s_cmp_eq_u32 {s(sRB4)}, 2")
        e(f"s_cselect_b32 {s(sT+1)}, {s(sT)}, {s(sT+1)}")
        e(f"v_add_u32 {v(vPOLL)}, {s(sT)}, {v(vT+5)}")
        e(f"v_mov_b32 {v(self.P2)}, {v(vPOLL)}")
        e("s_mov_b32 exec_lo, 0")
        e(f"v_add_u32 {v(self.P2)}, {s(sT+1)}, {v(vT+5)}")
        e("s_mov_b32 exec_lo, -1")
        e(f"s_xor_b32 {s(sT+2)}, {s(sT+2)}, 256")
        e(f"s_lshl_b32 {s(sT+1)}, {s(sSET)}, 9")
        e(f"s_add_u32 {s(sT+1)}, {s(sT+1)}, {s(sT+2)}")
        e(f"s_add_u32 {s(sT+1)}, {s(sT+1)}, {s(sT+3)}")
        e(f"s_lshl_b32 {s(sT+2)}, {s(sCS)}, 2")
        e(f"s_add_u32 {s(sHFL)}, {s(sT+1)}, {s(sT+2)}")
        e(f"s_lshl_b32 {s(sT)}, {s(sSET)}, 2")
        e(f"s_add_u32 {s(sT)}, {s(sT)}, {s(sRB4)}")
        e(f"s_mov_b32 {s(sHM)}, 0")
        e(f"s_cmp_eq_u32 {s(sRB4)}, 0")
        e(f"s_cselect_b32 {s(sHM)}, 0x7f, {s(sHM)}")
        e(f"s_cmp_eq_u32 {s(sRB4)}, 3")
        e(f"s_cselect_b32 {s(sHM)}, 0x7f, {s(sHM)}")
        e(f"s_mov_b32 {s(sHP)}, {s(sHM)}")
        e(f"s_cmp_eq_u32 {s(sT)}, 0")
        e(f"s_cselect_b32 {s(sHM)}, 0, {s(sHM)}")
        e(f"s_cmp_eq_u32 {s(sT)}, 31")
        e(f"s_cselect_b32 {s(sHM)}, 0, {s(sHM)}")
        e(f"s_mul_i32 {s(sT)}, {s(sRB4)}, 7")
        e(f"s_mov_b32 {s(sMSK)}, 0x1fffff")
        e(f"s_mov_b32 {s(sMSK+1)}, 0")
        e(f"s_lshl_b64 {s(sMSK,2)}, {s(sMSK,2)}, {s(sT)}")
        e(f"s_lshr_b64 {s(sMSK,2)}, {s(sMSK,2)}, 7")
        e(f"s_and_b32 {s(sM2)}, {s(sMSK)}, 0xfffffff")
        e(f"v_mov_b32 {v(vT)}, {s(sFLG)}")
        e(f"s_add_u32 {s(sT)}, {s(sFLG)}, {XTAB}")
        e(f"v_writelane_b32 {v(vT)}, {s(sT)}, 1")
        e(f"s_cmp_lg_u32 {s(sHP)}, 0")
        e(f"s_cselect_b32 {s(sT)}, {s(sHFL)}, {s(sFLG)}")
        e(f"v_writelane_b32 {v(vT)}, {s(sT)}, 2")
        e(f"v_writelane_b32 {v(vT)}, {s(sKFL)}, 3")
        e(f"v_mov_b32 {v(vT+1)}, 0")
        lab = self.newlabel("clr")
        e(f"s_cmp_lg_u32 {s(sWAVE)}, 0")
        e(f"s_cbranch_scc1 {lab}")
        e("s_mov_b64 exec, 15")
        e(f"buffer_store_dword {v(vT+1)}, {v(vT)}, {s(sWS,4)}, 0 offen sc1")
        e("s_mov_b64 exec, -1")
        self.label(lab)
        e(f"s_lshl_b32 {s(sT)}, s2, 2")
        e(f"s_add_u32 {s(sT)}, {s(sT)}, {s(sWAVE)}")
        for k, (L, N) in enumerate(((4, 3136), (13, 12544)) if 'kvtouch' in self.opt else ((2, 3136), (5, 12544))):
            e(f"s_mul_i32 {s(sT+1)}, {s(sT)}, {L}")
            e(f"v_min_u32 {v(vT)}, {L-1}, {v(vLANE)}")
            e(f"v_add_u32 {v(vT)}, {s(sT+1)}, {v(vT)}")
            if 'kvtouch' not in self.opt: e(f"v_mul_u32_u24 {v(vT)}, 3, {v(vT)}")
            e(f"v_min_u32 {v(vT)}, {N-12}, {v(vT)}")
            e(f"v_lshlrev_b32 {v(self.TW+k)}, 7, {v(vT)}")
        self.lane_g8(vG8, 896)
        self.lane_g8(self.G3, 3584)
        e(f"s_lshl_b32 {s(sT)}, {s(sWAVE)}, 12")
        e(f"s_add_u32 {s(sT)}, {s(sT)}, {XCH}")
        e(f"v_add_u32 {v(vXW)}, {s(sT)}, {v(vL16)}")
        e(f"v_xor_b32 {v(vXR)}, 0x2000, {v(vXW)}")
        for i in range(1, 4):
            e(f"s_add_u32 {s(sT)}, {s(sWAVE)}, {i}")
            e(f"s_and_b32 {s(sT)}, {s(sT)}, 3")
            e(f"s_mul_i32 {s(sT)}, {s(sT)}, 12288")
            e(f"s_add_u32 {s(sT)}, {s(sT)}, {MISC + (i-1)*4096}")
            e(f"v_add_u32 {v(self.CW+i-1)}, {s(sT)}, {v(vL16)}")
        e(f"s_mul_i32 {s(sT)}, {s(sWAVE)}, 12288")
        e(f"s_add_u32 {s(sT)}, {s(sT)}, {MISC}")
        e(f"v_add_u32 {v(self.CW+3)}, {s(sT)}, {v(vL16)}")
        e(f"s_mul_i32 {s(sT+2)}, {s(sTB3)}, {SLOT}")
        e(f"s_add_u32 {s(sT+2)}, {s(sT+2)}, {s(sLB)}")
        if OF: e(f"s_add_u32 {s(sT+2)}, {s(sT+2)}, {OF}")
        e(f"s_mul_i32 {s(sT)}, {s(sHEAD)}, 7")
        e(f"v_lshrrev_b32 {v(vT+1)}, 5, {v(vLANE)}")
        e(f"v_add_u32 {v(vT+1)}, {s(sT)}, {v(vT+1)}")
        e(f"v_and_b32 {v(vT+2)}, 31, {v(vLANE)}")
        e(f"v_lshl_add_u32 {v(vT+2)}, {v(vT+2)}, 4, {s(sT+2)}")
        e(f"v_and_b32 {v(vT+3)}, 1, {v(vT+1)}")
        e(f"v_lshl_add_u32 {v(vT+2)}, {v(vT+3)}, 9, {v(vT+2)}")
        for q in range(4):
            e(f"v_add_u32 {v(vT+3)}, {2*q}, {v(vT+1)}")
            e(f"v_lshrrev_b32 {v(vT+4)}, 2, {v(vT+3)}")
            e(f"v_lshl_add_u32 {v(vOST+q)}, {v(vT+4)}, 10, {v(vT+2)}")
            e(f"v_bfe_u32 {v(vT+4)}, {v(vT+3)}, 1, 1")
            e(f"v_lshl_add_u32 {v(vOST+q)}, {v(vT+4)}, 3, {v(vOST+q)}")
        e(f"s_mul_i32 {s(sT)}, {s(sSET)}, {SETSZ}")
        e(f"s_add_u32 {s(sT)}, {s(sT)}, {LB0}")
        e(f"s_lshl_b32 {s(sT+1)}, {s(sR)}, 2")
        e(f"s_add_u32 {s(sT+1)}, {s(sT+1)}, {s(sWAVE)}")
        e(f"s_mul_i32 {s(sT+1)}, {s(sT+1)}, {(2*U+32768)//128}")
        e(f"s_add_u32 {s(sT)}, {s(sT)}, {s(sT+1)}")
        e(f"v_min_u32 {v(vT+3)}, 29, {v(vLANE)}")
        e(f"v_lshl_add_u32 {v(vTCO)}, {v(vT+3)}, 7, {s(sT)}")
        vB = [self.HB, self.HB + 1]
        e(f"s_mul_i32 {s(sT+3)}, {s(sKH)}, 14336")
        e(f"s_add_u32 {s(sT+3)}, {s(sT+3)}, {s(sLB)}")
        e(f"s_add_u32 {s(sT+3)}, {s(sT+3)}, {HF}")
        e(f"s_lshl_b32 {s(sT+2)}, {s(sTB)}, 5")
        e(f"s_add_u32 {s(sT+4)}, {s(sKH)}, 1")
        e(f"s_mov_b32 {s(sT+5)}, {SLOT}")
        for d in range(2):
            e(f"v_and_b32 {v(vT)}, 31, {v(vLANE)}")
            e(f"v_add_u32 {v(vT)}, {s(sT+2)}, {v(vT)}")
            e(f"v_{'subrev' if d == 0 else 'add'}_u32 {v(vT)}, {s(sT+4)}, {v(vT)}")
            e(f"v_lshrrev_b32 {v(vT+1)}, 5, {v(vT)}")
            e(f"v_mul_lo_u32 {v(vB[d])}, {v(vT+1)}, {s(sT+5)}")
            e(f"v_and_b32 {v(vT+1)}, 31, {v(vT)}")
            e(f"v_lshl_add_u32 {v(vB[d])}, {v(vT+1)}, 4, {v(vB[d])}")
            e(f"v_and_b32 {v(vT+1)}, 512, {v(vL16)}")
            e(f"v_add3_u32 {v(vB[d])}, {v(vB[d])}, {v(vT+1)}, {s(sT+3)}")
            e(f"v_lshrrev_b32 {v(vT+1)}, 8, {v(vT)}")
            e(f"v_cmp_ne_u32 vcc, {s(sSET)}, {v(vT+1)}")
            e(f"v_add_u32 {v(vT+1)}, {s(sHD)}, {v(vB[d])}")
            self.nop(1)
            e(f"v_cndmask_b32 {v(vB[d])}, {v(vB[d])}, {v(vT+1)}, vcc")
            e(f"v_cmp_lt_u32 vcc, 0x7ff, {v(vT)}")
            e(f"v_bfrev_b32 {v(vT+1)}, 1")
            self.nop(1)
            e(f"v_cndmask_b32 {v(vB[d])}, {v(vB[d])}, {v(vT+1)}, vcc")

    def idle_warm(self):
        e = self.e
        e(f"s_sub_u32 {s(sT+2)}, {s(sR)}, 28")
        e(f"s_lshl_b32 {s(sT+2)}, {s(sT+2)}, 2")
        e(f"s_add_u32 {s(sT+2)}, {s(sT+2)}, {s(sWAVE)}")
        def w3():
            self.srd(sW, sPW3, 448 * 3584)
            e(f"v_lshlrev_b32 {v(vT)}, 8, {v(vLANE)}")
            for par in range(2):
                e(f"s_lshl_b32 {s(sT+3)}, {s(sT+2)}, 14")
                for j in range(7):
                    e(f"buffer_load_dword {v(vDUM)}, {v(vT)}, {s(sW,4)}, {s(sT+3)} offen offset:{128*par}")
                    if j < 6: e(f"s_add_u32 {s(sT+3)}, {s(sT+3)}, {16*16384}")
        def hh():
            e(f"v_lshlrev_b32 {v(vT)}, 7, {v(vLANE)}")
            e(f"s_mul_i32 {s(sT+3)}, {s(sSET)}, {SETSZ}")
            e(f"s_mul_i32 {s(sT+4)}, {s(sT+2)}, {4*U//16}")
            e(f"s_add_u32 {s(sT+3)}, {s(sT+3)}, {s(sT+4)}")
            e(f"s_add_u32 {s(sT+3)}, {s(sT+3)}, {LB0 + HH}")
            for j in range(7):
                e(f"buffer_load_dword {v(vDUM)}, {v(vT)}, {s(sWS,4)}, {s(sT+3)} offen sc1")
                e(f"s_add_u32 {s(sT+3)}, {s(sT+3)}, 8192")
        if 'idleA' not in self.opt and 'idleC' not in self.opt:
            w3(); hh()
        elif 'idleC' in self.opt:
            hh(); w3()
        else:
            l1, l2 = self.newlabel("iw"), self.newlabel("iw")
            e(f"s_cmp_lg_u32 {s(sLAYER)}, 0")
            e(f"s_cbranch_scc1 {l1}")
            hh()
            e(f"s_branch {l2}")
            self.label(l1)
            w3()
            self.label(l2)
        self.srd(sW, sPW4, 1792 * 896)
        e(f"v_min_u32 {v(vT)}, 48, {v(vLANE)}")
        e(f"v_lshlrev_b32 {v(vT)}, 7, {v(vT)}")
        e(f"s_lshr_b32 {s(sT+3)}, {s(sT+2)}, 3")
        e(f"s_mul_i32 {s(sT+3)}, {s(sT+3)}, {896*896}")
        e(f"s_and_b32 {s(sT+4)}, {s(sT+2)}, 7")
        e(f"s_mul_i32 {s(sT+4)}, {s(sT+4)}, {98*128}")
        e(f"s_add_u32 {s(sT+3)}, {s(sT+3)}, {s(sT+4)}")
        for c in range(8):
            e(f"buffer_load_dword {v(vDUM)}, {v(vT)}, {s(sW,4)}, {s(sT+3)} offen")
            e(f"s_add_u32 {s(sT+3)}, {s(sT+3)}, {49*128}")
            e(f"buffer_load_dword {v(vDUM)}, {v(vT)}, {s(sW,4)}, {s(sT+3)} offen")
            e(f"s_add_u32 {s(sT+3)}, {s(sT+3)}, {112*896 - 49*128}")
        self.stamp('idle_w')

    CW, G3, P2, HB, KVP, ZO, TW, XO = 204, 240, 241, 242, 244, 245, 246, 100
    def kernel(self):
        e = self.e
        self.outofline = []
        self.begin(NAME + "_kernel")
        self.setup("L_done")
        e(f"s_mov_b32 {s(sLAYER)}, 0")
        if 'dbgclk' in self.opt:
            e(f"s_memtime s[{sT}:{sT+1}]"); e(f"s_memrealtime s[{sT+2}:{sT+3}]"); e("s_waitcnt lgkmcnt(0)")
            e(f"v_mov_b32 {v(vT)}, {s(sT)}"); e(f"v_accvgpr_write_b32 a250, {v(vT)}")
            e(f"v_mov_b32 {v(vT)}, {s(sT+2)}"); e(f"v_accvgpr_write_b32 a251, {v(vT)}")
        if 'nocodetouch' not in self.opt:
            e(f"s_getpc_b64 {s(sT,2)}")
            self.label("L_pc0")
            e(f"s_lshl_b32 {s(sT+2)}, {s(sR)}, 2")
            e(f"s_add_u32 {s(sT+2)}, {s(sT+2)}, {s(sWAVE)}")
            e(f"v_and_b32 {v(vT)}, 3, {v(vLANE)}")
            e(f"v_lshl_add_u32 {v(vT)}, {s(sT+2)}, 2, {v(vT)}")
            e(f"v_lshlrev_b32 {v(vT)}, 7, {v(vT)}")
            e(f"v_min_u32 {v(vT)}, L_code_end-L_pc0-4, {v(vT)}")
            e(f"global_load_dword {v(vDUM)}, {v(vT)}, {s(sT,2)}")
        self.qkv0_issue()
        self.stamp('q0_iss')
        e(f"v_mov_b32 v53, {v(vT+2)}")
        self.roles()
        self.stamp('q0_roles')
        e(f"v_mov_b32 {v(vT+2)}, v53")
        if 'q0notouch' not in self.opt: self.emit_items(self.qkv0_group(0))
        self.emit_items(self.qkv0_group(1))
        self.epoch_publish()
        self.qkv0()
        self.label("L_kv")
        self.kv_out()
        self.attention()
        idle = "L_idle"
        e(f"s_cmp_ge_u32 {s(sR)}, 28")
        e(f"s_cbranch_scc1 {idle}")
        for k in ('wo', 'w1', 'w2'): self.small(k)
        self.w3()
        self.w4()
        self.label(idle)
        if 'nowarm' not in self.opt: self.idle_warm()
        e(f"s_cmp_lg_u32 {s(sLAYER)}, 0")
        e(f"s_cbranch_scc1 {'L_clean' if 'wb' in self.opt else 'L_end'}")
        def clean():
            self.label("L_clean")
            e(f"s_lshl_b32 {s(sT)}, {s(sR)}, 2")
            e(f"s_add_u32 {s(sT)}, {s(sT)}, {s(sWAVE)}")
            e(f"s_cmp_lg_u32 {s(sT)}, 112")
            e(f"s_cbranch_scc1 L_end")
            e(f"s_mov_b32 {s(sMSK)}, 0xfffffff")
            e(f"s_mov_b32 {s(sMSK+1)}, 0")
            self.poll(5)
            e("buffer_wbl2 sc1")
            e("s_waitcnt vmcnt(0)")
            e("s_branch L_end")
        if 'wb' in self.opt: self.outofline.append(clean)
        self.wimg_bases()
        e(f"s_mov_b32 {s(sMSK)}, 0xfffffff")
        e(f"s_mov_b32 {s(sMSK+1)}, 0")
        self.poll(4)
        e(f"s_sub_u32 {s(sT+2)}, {s(sR)}, 28")
        e(f"s_lshl_b32 {s(sT+2)}, {s(sT+2)}, 2")
        e(f"s_add_u32 {s(sT+2)}, {s(sT+2)}, {s(sWAVE)}")
        e(f"s_mul_i32 {s(sT+2)}, {s(sT+2)}, {WIMG_S}")
        e(f"s_add_u32 {s(sT+2)}, {s(sT+2)}, {WIMG}")
        e(f"v_lshlrev_b32 {v(vT)}, 7, {v(vLANE)}")
        for i in range(11):
            self.vmem(f"buffer_load_dword {v(vDUM)}, {v(vT)}, {s(sWS,4)}, {s(sT+2)} offen sc1", "tch")
            e(f"s_add_u32 {s(sT+2)}, {s(sT+2)}, 8192")
        self.emit_items(self.dma_wimg(0, S4) + self.dma_wimg(1, S0) + self.dma_wimg(2, S1) + self.dma_wimg_cs())
        self.vm = []
        self.label("L_qkv")
        self.qkv1()
        if self.stop == 'l0': e("s_branch L_done")
        e("s_branch L_kv")
        self.label("L_end")
        if 'dbgclk' in self.opt:
            e(f"s_memtime s[{sT}:{sT+1}]"); e(f"s_memrealtime s[{sT+2}:{sT+3}]"); e("s_waitcnt lgkmcnt(0)")
            e(f"v_accvgpr_read_b32 v6, a250"); e(f"v_accvgpr_read_b32 v7, a251")
            e(f"v_sub_u32 v6, {s(sT)}, v6"); e(f"v_sub_u32 v7, {s(sT+2)}, v7")
            e(f"s_lshr_b32 {s(sT)}, s2, 5"); e(f"s_lshl_b32 {s(sT)}, {s(sT)}, 3"); e(f"s_add_u32 {s(sT)}, {s(sT)}, 8")
            e(f"v_mov_b32 v5, {s(sT)}")
            e(f"s_and_b32 {s(sT)}, s2, 31"); e(f"s_add_u32 {s(sT)}, {s(sT)}, {s(sWAVE)}")
            e(f"s_cmp_lg_u32 {s(sT)}, 0"); e("s_cbranch_scc1 L_done")
            e(f"s_cmp_ge_u32 s2, 224"); e("s_cbranch_scc1 L_done")
            e("s_mov_b64 exec, 1")
            e(f"global_store_dwordx2 v5, v[6:7], {s(sPDBG,2)}")
        self.dump_stamps()
        self.label("L_done")
        e("s_endpgm")
        while self.outofline: self.outofline.pop(0)()
        self.flush_tails()
        self.label("L_code_end")

sZH, sZX = sOW4, sOIM
TSZ = SETSZ if DEBUG_LAYOUT else 2 * U + 32768
TLINES = -(-TSZ // (128 * 128 * 12))
sTILE, sSTAT, sBB, sHX, sM2, sHP = 95, 96, 97, 98, 99, 100

def build(stamps=False, stop=None, force_slow=False, opt=()):
    g = Gen2(stamps, stop, force_slow, opt)
    g.tails = []
    hdr = open('cdna_kernels/' + NAME + '.s.ref').read().split('\n')
    hdr = [l for l in hdr if l.startswith(';   ') or l.startswith('; Kernarg')]
    hdr = [l for l in hdr if 'launch' not in l]
    out = "\n".join(hdr) + "\n"
    out += f"; @launch grid=(256,1,1) block=(256,1,1) lds={LDS_BYTES}\n"
    out += '.amdgcn_target "amdgcn-amd-amdhsa--gfx950"\n.text\n'
    g.kernel()
    out += g.text()
    if stamps: out += "; STAMPS " + ",".join(g.stnames) + "\n"
    out += '.section .rodata,"a"\n'
    out += ".p2align 6\n" + descriptor(NAME + "_kernel")
    return out

if __name__ == '__main__':
    import argparse, lint
    ap = argparse.ArgumentParser()
    ap.add_argument('-o', default='cdna_kernels/' + NAME + '.s')
    ap.add_argument('--stamps', action='store_true')
    ap.add_argument('--slow', action='store_true')
    ap.add_argument('--stop')
    ap.add_argument('--opt', default='')
    a_ = ap.parse_args()
    txt = build(a_.stamps, a_.stop, a_.slow, a_.opt.split(','))
    open(a_.o, 'w').write(txt)
    errs = lint.lint(txt)
    for x in errs: print(x)
    print(len(errs), "hazards;", txt.count('\n'), "lines")
```
